```python
import torch

def _softmax(x, axis=-1):
    return torch.softmax(x, dim=axis)
def _gelu(x):
    return torch.nn.functional.gelu(x, approximate="tanh")
def _silu(x):
    return torch.nn.functional.silu(x)
def _sigmoid(x):
    return torch.sigmoid(x)
def _layernorm(x, axis=-1, eps=1e-5):
    m = x.mean(dim=axis, keepdim=True)
    v = x.var(dim=axis, keepdim=True, unbiased=False)
    return (x - m) / torch.sqrt(v + eps)
def _scatter_add(tgt, idx, src, axis=0):
    return tgt.clone().index_add_(axis, idx, src)
def _segment_sum(src, seg, n):
    out = torch.zeros((n,) + src.shape[1:], dtype=src.dtype)
    return out.index_add_(0, seg, src)
def _pad(x, pw):
    flat = tuple(v for pair in reversed(pw) for v in pair)
    return torch.nn.functional.pad(x, flat)

kernel_name = 'parallel_sum__sliding_block_cached__dense_activation_silu__decode'

def setup_inputs():

    _w = (lambda a: (lambda t: t.to(torch.bfloat16) if t.is_floating_point() else t)(torch.as_tensor(a)))
    def _A_setup():
        B, Sq, D = 1, 1, 640
        Hq, Hkv, Sk, Dh = 32, 32, 4096, 128
        assert Hq % Hkv == 0, (Hq, Hkv)
        return {
            "x": _w((lambda *s: torch.randn(*s, dtype=torch.bfloat16) * 0.05)(B, Sq, D)),
            "k_cache": _w((lambda *s: torch.randn(*s, dtype=torch.bfloat16) * 3.2)(B, Hkv, Sk, Dh)),
            "v_cache": _w((lambda *s: torch.randn(*s, dtype=torch.bfloat16) * 0.8)(B, Hkv, Sk, Dh)),
            "wq": _w((lambda *s: torch.randn(*s, dtype=torch.bfloat16) * 3.2)(D, Hq * Dh) * (D ** -0.5)),
            "wo": _w((lambda *s: torch.randn(*s, dtype=torch.bfloat16) * 0.8)(Hq * Dh, D) * ((Hq * Dh) ** -0.5)),
        }
    _A_in = _A_setup()

    def _B_setup():
        B, S, D, F = 1, 1, 640, 1728
        return {
            "x": _w((lambda *s: torch.randn(*s, dtype=torch.bfloat16) * 0.05)(B, S, D)),
            "w1": _w((lambda *s: torch.randn(*s, dtype=torch.bfloat16) * 3.2)(D, F) * (D ** -0.5)),
            "w2": _w((lambda *s: torch.randn(*s, dtype=torch.bfloat16) * 0.4)(F, D) * (F ** -0.5)),
        }
    _B_in = _B_setup()

    return {
        "A_x": _A_in["x"],
        "A_k_cache": _A_in["k_cache"],
        "A_v_cache": _A_in["v_cache"],
        "A_wq": _A_in["wq"],
        "A_wo": _A_in["wo"],
        "B_x": _B_in["x"],
        "B_w1": _B_in["w1"],
        "B_w2": _B_in["w2"],
    }

def reference(A_x, A_k_cache, A_v_cache, A_wq, A_wo, B_x, B_w1, B_w2):
    def _A_ref(x, k_cache, v_cache, wq, wo):
        B, Sq, D = x.shape
        Hq, Dh = 32, 128
        Hkv, Sk = k_cache.shape[1], k_cache.shape[2]
        W = min(4096, max(256, Sk // 4))
        rep = Hq // Hkv
        q = (lambda x, *d: x.permute(*d))((x @ wq).reshape(B, Sq, Hq, Dh), 0, 2, 1, 3)
        k = (lambda x, n, axis: torch.repeat_interleave(x, n, dim=axis))(k_cache[:, :, Sk - W:, :], rep, axis=1)
        v = (lambda x, n, axis: torch.repeat_interleave(x, n, dim=axis))(v_cache[:, :, Sk - W:, :], rep, axis=1)
        scores = torch.einsum("bhqd,bhkd->bhqk", q, k) * (Dh ** -0.5)
        p = _softmax(scores, axis=-1)
        o = torch.einsum("bhqk,bhkd->bhqd", p, v)
        return (lambda x, *d: x.permute(*d))(o, 0, 2, 1, 3).reshape(B, Sq, Hq * Dh) @ wo

    def _B_ref(x, w1, w2):
        h = torch.einsum("bsd,df->bsf", x, w1)
        h = _silu(h)
        out = torch.einsum("bsf,fd->bsd", h, w2)
        return out

    x = A_x
    xn = _layernorm(x, axis=-1)
    return x + _A_ref(xn, A_k_cache, A_v_cache, A_wq, A_wo) + _B_ref(xn, B_w1, B_w2)
```

```python
NAME = "parallel_sum__sliding_block_cached__dense_activation_silu__decode"
WS = 268435456
STAMP_OFF = WS - (1 << 20)
SIZES = {"x": 1280, "k": 33554432, "v": 33554432, "wq": 640*4096*2, "wo": 4096*640*2, "bx": 1280, "w1": 640*1728*2, "w2": 1728*640*2, "out": 1280, "dbg": 256, "ws": WS}
KOFF = {"x": 0, "k": 8, "v": 16, "wq": 24, "wo": 32, "bx": 40, "w1": 48, "w2": 56, "out": 64, "dbg": 72, "ws": 80}

def header(grid, block, lds):
    return f"""; @launch grid=({grid},1,1) block=({block},1,1) lds={lds}
.amdgcn_target "amdgcn-amd-amdhsa--gfx950"
.text
.globl {NAME}_kernel
.p2align 8
.type {NAME}_kernel,@function
{NAME}_kernel:
"""

def footer(vgpr, sgpr=102, accum=None, extra=""):
    if accum is None: accum = min(256, (vgpr + 3) // 4 * 4)
    return f"""s_endpgm
.fill 512, 4, 0xBF800000
.section .rodata,"a"
.p2align 6
.amdhsa_kernel {NAME}_kernel
  .amdhsa_next_free_vgpr {vgpr}
  .amdhsa_next_free_sgpr {sgpr}
  .amdhsa_accum_offset {accum}
  .amdhsa_group_segment_fixed_size 0
  .amdhsa_kernarg_size 88
  .amdhsa_user_sgpr_count 2
  .amdhsa_user_sgpr_kernarg_segment_ptr 1
  .amdhsa_system_sgpr_workgroup_id_x 1
{extra}.end_amdhsa_kernel
"""
```

```python
import sys
from common import *

EPOCH_OFF = 0
X1Q = 0x1000
X1H = X1Q + 256 * 1024
X2O = X1H + 256 * 512
X2ML = X2O + 256 * 1024
X3 = X2ML + 4096
F_KV, F_Q, F_ML, F_O = 0, 4, 8, 12
L_Q = 0x100
L_HP = 0x200
L_OP = 0x300
L_ML = 0x500
L_OW = 0x600
L_YW = 0xE00
L_XP = 0x1600
LDS_BYTES = 0x1A00
LOG2E = 0x3FB8AA3B
SCALE = 0x3DB504F3
SPIN_CAP = 1 << 18

def gen(fname, ldflags="nt", stamps=False, lds=None, bar0=True):
    o = []
    def e(s): o.append(s)
    nst = [0]
    def stamp(k):
        if stamps: e(f"  s_memrealtime s[{80 + 2 * k}:{81 + 2 * k}]")
    def write_stamps(n):
        if not stamps: return
        e("  s_waitcnt lgkmcnt(0)")
        e(f"  s_mul_i32 s70, s2, 10\n  s_add_u32 s70, s70, s26\n  s_lshl_b32 s70, s70, 6\n  s_add_u32 s70, s70, {STAMP_OFF}")
        e("  s_mov_b64 exec, 1\n  v_mov_b32 v8, 0")
        for k in range(0, 8, 2):
            e(f"  v_mov_b32 v4, s{80+2*k}\n  v_mov_b32 v5, s{81+2*k}\n  v_mov_b32 v6, s{82+2*k}\n  v_mov_b32 v7, s{83+2*k}")
            e(f"  buffer_store_dwordx4 v[4:7], v8, s[36:39], s70 offen offset:{8*k}\n  s_nop 1")
    def srd(d, src, size):
        e(f"  s_mov_b32 s{d}, s{src}\n  s_mov_b32 s{d+1}, s{src+1}\n  s_mov_b32 s{d+2}, {size}\n  s_mov_b32 s{d+3}, 0x20000")
    lab = [0]
    def spin_lds(flag, n):
        lab[0] += 1; L = f"L_spin{lab[0]}"
        e(f"  s_mov_b32 s71, {SPIN_CAP}\n  v_mov_b32 v9, 0")
        e(f"{L}:\n  ds_read_b32 v8, v9 offset:{flag}\n  s_sub_u32 s71, s71, 1\n  s_cbranch_scc1 {L}_x\n  s_waitcnt lgkmcnt(0)\n  v_readfirstlane_b32 s72, v8\n  s_cmp_ge_u32 s72, {n}\n  s_cbranch_scc0 {L}\n{L}_x:\n  s_waitcnt lgkmcnt(0)")
    def signal_add(flag):
        e(f"  s_mov_b64 exec, 1\n  v_mov_b32 v8, 1\n  v_mov_b32 v9, 0\n  ds_add_u32 v9, v8 offset:{flag}\n  s_mov_b64 exec, -1")
    def allred_rows(op, v, t):
        e(f"  v_mov_b32 v{t}, v{v}\n  s_nop 1\n  v_permlane16_swap_b32 v{v}, v{t}\n  {op} v{v}, v{v}, v{t}\n  v_mov_b32 v{t}, v{v}\n  s_nop 1\n  v_permlane32_swap_b32 v{v}, v{t}\n  {op} v{v}, v{v}, v{t}")
    def allred_inrow(op, v, rors):
        for r in rors:
            e(f"  s_nop 1\n  {op}_dpp v{v}, v{v}, v{v} row_ror:{r} row_mask:0xf bank_mask:0xf")
    def bf16r(d, s):
        e(f"  v_cvt_pk_bf16_f32 v{d}, v{s}, v{s}\n  v_and_b32 v{d}, 0xffff0000, v{d}")
    def ands(a, pp):
        for r in range(4): e(f"  v_and_b32 v{a+r}, v{pp}, v{12+r}")

    e(header(256, 640, lds if lds else LDS_BYTES))
    e("  s_cmp_ge_u32 s2, 256\n  s_cbranch_scc1 L_end")
    if stamps:
        for k in range(8): e(f"  s_mov_b64 s[{80+2*k}:{81+2*k}], 0")
    stamp(0)
    e("  s_load_dwordx16 s[4:19], s[0:1], 0\n  s_load_dwordx4 s[20:23], s[0:1], 64\n  s_load_dwordx2 s[24:25], s[0:1], 80")
    e("  v_lshrrev_b32 v1, 6, v0\n  v_and_b32 v0, 63, v0\n  v_and_b32 v2, 15, v0\n  v_readfirstlane_b32 s26, v1\n  v_lshrrev_b32 v3, 4, v0")
    e("  s_and_b32 s27, s2, 7\n  s_lshr_b32 s28, s2, 3\n  s_lshr_b32 s29, s28, 3\n  s_lshl_b32 s27, s27, 2\n  s_add_u32 s27, s27, s29\n  s_and_b32 s28, s28, 7")
    e("  s_lshl_b32 s29, s27, 3\n  s_add_u32 s29, s29, s28")
    e("  v_and_b32 v4, 1, v0\n  v_lshlrev_b32 v4, 4, v4\n  v_mov_b32 v5, 0xffff\n  v_lshlrev_b32 v5, v4, v5")
    e("  v_bfe_u32 v4, v0, 1, 2")
    for r in range(4):
        e(f"  v_cmp_eq_u32 vcc, {r}, v4\n  s_nop 1\n  v_cndmask_b32 v{12+r}, 0, v5, vcc")
    e("  v_lshlrev_b32 v16, 4, v2")
    e("  v_lshlrev_b32 v17, 4, v0")
    e("  s_waitcnt lgkmcnt(0)")
    srd(36, 24, WS)
    e("  s_cmp_ge_u32 s26, 6\n  s_cbranch_scc1 L_W\n  s_cmp_ge_u32 s26, 2\n  s_cbranch_scc1 L_KV")

    e(f"  s_load_dword s30, s[24:25], {EPOCH_OFF}")
    srd(40, 4, 1280)
    e("  buffer_load_dwordx4 v[20:23], v17, s[40:43], 0 offen\n  buffer_load_dwordx4 v[24:27], v17, s[40:43], 0 offen offset:1024")
    e("  s_mul_i32 s31, s28, 160\n  v_lshlrev_b32 v4, 2, v0\n  buffer_load_dword v28, v4, s[40:43], s31 offen")
    e("  s_cmp_eq_u32 s26, 1\n  s_cbranch_scc1 L_B0")
    srd(44, 10, SIZES["wq"])
    e("  v_mul_u32_u24 v5, 163840, v3\n  v_add_u32 v5, v5, v16")
    e("  s_mul_i32 s32, s28, 655360\n  s_lshl_b32 s33, s27, 8\n  s_add_u32 s32, s32, s33\n  s_movk_i32 s34, 0x2000")
    for t in range(20):
        e(f"  buffer_load_dwordx4 v[{48+4*t}:{51+4*t}], v5, s[44:47], s32 offen {ldflags}")
        if t < 19: e("  s_add_u32 s32, s32, s34")
    e("  s_lshl_b32 s33, s27, 3\n  s_add_u32 s33, s33, s31\n  v_and_b32 v4, 1, v0\n  v_lshlrev_b32 v4, 2, v4\n  buffer_load_dword v1, v4, s[40:43], s33 offen")
    e("  v_mov_b32 v4, 0\n  v_mov_b32 v6, 0\n  v_mov_b32 v7, 0\n  v_mov_b32 v8, 0\n  v_mov_b32 v9, 0\n  ds_write_b128 v4, v[6:9]\n  s_waitcnt lgkmcnt(0)")
    e(f"  s_movk_i32 s35, {L_XP}\n  s_branch L_AB1")
    e("L_B0:")
    srd(44, 16, SIZES["w1"])
    e("  v_lshrrev_b32 v4, 3, v2\n  v_lshl_add_u32 v4, v3, 1, v4\n  v_mul_u32_u24 v5, 34560, v4\n  v_and_b32 v6, 7, v2\n  v_lshl_add_u32 v5, v6, 4, v5")
    e("  s_mul_i32 s32, s28, 276480\n  s_lshl_b32 s33, s27, 7\n  s_add_u32 s32, s32, s33\n  s_cmp_ge_u32 s27, 27\n  s_cselect_b32 s32, 0x7f000000, s32\n  s_movk_i32 s34, 3456")
    for t in range(10):
        e(f"  buffer_load_dwordx4 v[{48+4*t}:{51+4*t}], v5, s[44:47], s32 offen {ldflags}")
        if t < 9: e("  s_add_u32 s32, s32, s34")
    e(f"  s_movk_i32 s35, {L_XP + 512}")
    e("L_AB1:")
    e("  s_barrier")
    stamp(1)
    e("  s_waitcnt lgkmcnt(0)")
    e("  s_mul_i32 s60, s30, 0x9E3779B1\n  s_add_u32 s60, s60, 0x7F4A7C15\n  s_xor_b32 s61, s30, 0x5bd1e995\n  s_mul_i32 s61, s61, 0x85EBCA6B\n  s_add_u32 s61, s61, 0x1B873593")
    e("  s_cmp_eq_u32 s26, 1\n  s_cbranch_scc1 L_Bw\n  s_waitcnt vmcnt(21)\n  s_branch L_ABw\nL_Bw:\n  s_waitcnt vmcnt(10)\nL_ABw:")
    stamp(2)
    for k in range(8):
        e(f"  v_lshlrev_b32 v{30+2*k}, 16, v{20+k}\n  v_and_b32 v{31+2*k}, 0xffff0000, v{20+k}")
    e("  v_add_f32 v4, v30, v31")
    for k in range(2, 16): e(f"  v_add_f32 v4, v4, v{30+k}")
    allred_inrow("v_add_f32", 4, [8, 4, 2, 1]); allred_rows("v_add_f32", 4, 5)
    e("  v_mul_f32 v4, 0x3ACCCCCD, v4")
    for k in range(16): e(f"  v_sub_f32 v{30+k}, v{30+k}, v4")
    e("  v_mul_f32 v6, v38, v38")
    for k in range(9, 16): e(f"  v_fmac_f32 v6, v{30+k}, v{30+k}")
    e("  v_cmp_gt_u32 vcc, 16, v0\n  s_nop 1\n  v_cndmask_b32 v6, 0, v6, vcc")
    for k in range(8): e(f"  v_fmac_f32 v6, v{30+k}, v{30+k}")
    allred_inrow("v_add_f32", 6, [8, 4, 2, 1]); allred_rows("v_add_f32", 6, 5)
    e("  v_mul_f32 v6, 0x3ACCCCCD, v6")
    bf16r(6, 6)
    e("  v_add_f32 v6, 0x3727C5AC, v6")
    bf16r(6, 6)
    e("  v_sqrt_f32 v7, v6\n  s_nop 0\n  v_rcp_f32 v5, v7\n  v_fma_f32 v10, -v7, v7, v6\n  v_mul_f32 v5, 0.5, v5\n  v_fmac_f32 v7, v10, v5")
    bf16r(7, 7)
    bf16r(4, 4)
    e("  v_rcp_f32 v5, v7")
    e("  v_lshlrev_b32 v30, 16, v28\n  v_and_b32 v31, 0xffff0000, v28\n  v_sub_f32 v30, v30, v4\n  v_sub_f32 v31, v31, v4")
    e("  v_cvt_pk_bf16_f32 v30, v30, v31\n  v_and_b32 v31, 0xffff0000, v30\n  v_lshlrev_b32 v30, 16, v30")
    for k in (30, 31):
        e(f"  v_mul_f32 v32, v{k}, v5\n  v_fma_f32 v33, -v32, v7, v{k}\n  v_fma_f32 v{k}, v33, v5, v32\n  v_cvt_pk_bf16_f32 v{k}, v{k}, v{k}")
    e("  v_lshl_add_u32 v4, v0, 3, s35\n  v_cmp_gt_u32 vcc, 40, v0\n  s_and_saveexec_b64 s[62:63], vcc\n  ds_write_b64 v4, v[30:31]\n  s_mov_b64 exec, s[62:63]")
    e("  s_mov_b32 s64, 0\n  s_mov_b32 s65, -1")
    e("  v_and_b32 v4, 1, v3\n  v_lshlrev_b32 v4, 5, v4\n  v_lshrrev_b32 v5, 1, v3\n  v_lshl_add_u32 v4, v5, 4, v4")
    e("  s_cmp_eq_u32 s26, 1\n  s_cbranch_scc1 L_B1")

    e("  v_lshl_add_u32 v18, v2, 6, v4")
    e("  v_mul_u32_u24 v5, 80, v3\n  v_add_u32 v5, s35, v5")
    for k in range(5): e(f"  ds_read_b128 v[{20+4*k}:{23+4*k}], v5 offset:{16*k}")
    e("  s_waitcnt lgkmcnt(0)")
    stamp(3)
    for t in range(20):
        a = 40 if t % 2 == 0 else 44
        ands(a, 20 + t)
        e(f"  s_waitcnt vmcnt({20 - t})\n  s_nop 0")
        e(f"  v_mfma_f32_16x16x32_bf16 v[4:7], v[{a}:{a+3}], v[{48+4*t}:{51+4*t}], {'0' if t == 0 else 'v[4:7]'}")
    e("  v_mov_b32 v9, s60\n  v_mov_b32 v11, s61\n  s_lshl_b32 s32, s29, 10\n  s_add_u32 s32, s32, %d\n  s_nop 4" % X1Q)
    e("  v_cndmask_b32 v8, v4, v6, s[64:65]\n  v_cndmask_b32 v10, v5, v7, s[64:65]")
    e("  buffer_store_dwordx4 v[8:11], v18, s[36:39], s32 offen sc1")
    stamp(4)
    e(f"  s_lshl_b32 s32, s27, 13\n  s_add_u32 s32, s32, {X1Q}\n  s_add_u32 s33, s32, 4096\n  s_lshl_b32 s34, s27, 12\n  s_add_u32 s34, s34, {X1H}")
    e(f"  s_mov_b32 s71, {SPIN_CAP}")
    e("L_g1:")
    for k in range(8): e(f"  buffer_load_dwordx4 v[{48+4*k}:{51+4*k}], v17, s[36:39], s{32 + k // 4} offen offset:{(k % 4) * 1024} sc1")
    for k in range(4): e(f"  buffer_load_dwordx4 v[{80+4*k}:{83+4*k}], v17, s[36:39], s34 offen offset:{k * 1024} sc1")
    e("  s_sub_u32 s71, s71, 1\n  s_cbranch_scc1 L_g1x\n  v_mov_b32 v4, 0")
    for k in range(12):
        e(f"  s_waitcnt vmcnt({11 - k})\n  v_sad_u32 v4, v{49+4*k}, s60, v4 clamp\n  v_sad_u32 v4, v{51+4*k}, s61, v4 clamp")
    e("  v_cmp_ne_u32 vcc, 0, v4\n  s_cbranch_vccnz L_g1\nL_g1x:\n  s_waitcnt vmcnt(0)")
    for k in range(1, 8): e(f"  v_add_f32 v48, v48, v{48+4*k}\n  v_add_f32 v50, v50, v{50+4*k}")
    for k in range(1, 4): e(f"  v_add_f32 v80, v80, v{80+4*k}\n  v_add_f32 v82, v82, v{82+4*k}")
    e(f"  v_cvt_pk_bf16_f32 v48, v48, v50\n  v_lshlrev_b32 v4, 2, v0\n  ds_write_b32 v4, v48 offset:{L_Q}")
    e("  v_mov_b32 v81, v80\n  v_mov_b32 v83, v82\n  s_nop 1\n  v_permlane32_swap_b32 v80, v81\n  v_permlane32_swap_b32 v82, v83\n  v_add_f32 v80, v80, v81\n  v_add_f32 v82, v82, v83")
    for k in (80, 82):
        bf16r(k, k)
        e(f"  v_mul_f32 v84, {hex(LOG2E | 0x80000000)}, v{k}\n  v_exp_f32 v84, v84\n  s_nop 0\n  v_add_f32 v84, 1.0, v84\n  v_rcp_f32 v85, v84\n  s_nop 0\n  v_mul_f32 v{k}, v{k}, v85\n  v_cvt_pk_bf16_f32 v{k}, v{k}, v{k}")
    e(f"  v_mov_b32 v81, v82\n  v_lshlrev_b32 v19, 3, v0\n  s_mov_b32 exec_hi, 0\n  ds_write_b64 v19, v[80:81] offset:{L_HP}\n  s_mov_b64 exec, -1")
    signal_add(F_Q)
    stamp(5)
    spin_lds(F_ML, 4)
    e(f"  v_mov_b32 v4, 0\n  ds_read_b128 v[20:23], v4 offset:{L_ML}\n  ds_read_b128 v[24:27], v4 offset:{L_ML+16}\n  s_waitcnt lgkmcnt(0)")
    e("  v_max_f32 v28, v20, v22\n  v_max3_f32 v28, v28, v24, v26")
    for k in range(4):
        e(f"  v_sub_f32 v{20+2*k}, v{20+2*k}, v28\n  v_mul_f32 v{20+2*k}, {hex(LOG2E)}, v{20+2*k}\n  v_exp_f32 v{20+2*k}, v{20+2*k}")
    e("  s_nop 0\n  v_mul_f32 v10, v20, v21\n  v_fmac_f32 v10, v22, v23\n  v_fmac_f32 v10, v24, v25\n  v_fmac_f32 v10, v26, v27\n  v_mov_b32 v8, v28\n  v_mov_b32 v9, s60")
    e(f"  s_lshl_b32 s32, s29, 4\n  s_add_u32 s32, s32, {X2ML}\n  v_mov_b32 v30, 0\n  s_mov_b64 exec, 1\n  buffer_store_dwordx4 v[8:11], v30, s[36:39], s32 offen sc1\n  s_mov_b64 exec, -1")
    spin_lds(F_O, 4)
    for k in range(4): e(f"  ds_read_b64 v[{32+2*k}:{33+2*k}], v19 offset:{L_OW + 512*k}")
    e("  v_mov_b32 v9, s60\n  s_waitcnt lgkmcnt(3)\n  v_mul_f32 v8, v20, v32\n  v_mul_f32 v10, v20, v33")
    for k in range(1, 4): e(f"  s_waitcnt lgkmcnt({3-k})\n  v_fmac_f32 v8, v{20+2*k}, v{32+2*k}\n  v_fmac_f32 v10, v{20+2*k}, v{33+2*k}")
    e(f"  s_lshl_b32 s32, s29, 10\n  s_add_u32 s32, s32, {X2O}\n  buffer_store_dwordx4 v[8:11], v17, s[36:39], s32 offen sc1")
    stamp(6)
    e(f"  s_lshl_b32 s32, s27, 13\n  s_add_u32 s32, s32, {X2O}\n  s_add_u32 s33, s32, 4096\n  s_lshl_b32 s34, s27, 7\n  s_add_u32 s34, s34, {X2ML}")
    e(f"  v_and_b32 v5, 7, v0\n  v_lshlrev_b32 v5, 4, v5\n  s_mov_b32 s71, {SPIN_CAP}")
    e("L_g2:")
    e("  buffer_load_dwordx4 v[80:83], v5, s[36:39], s34 offen sc1")
    for k in range(8): e(f"  buffer_load_dwordx4 v[{48+4*k}:{51+4*k}], v17, s[36:39], s{32 + k // 4} offen offset:{(k % 4) * 1024} sc1")
    e("  s_sub_u32 s71, s71, 1\n  s_cbranch_scc1 L_g2x\n  v_mov_b32 v4, 0")
    e("  s_waitcnt vmcnt(8)\n  v_sad_u32 v4, v81, s60, v4 clamp\n  v_sad_u32 v4, v83, s61, v4 clamp")
    for k in range(8):
        e(f"  s_waitcnt vmcnt({7 - k})\n  v_sad_u32 v4, v{49+4*k}, s60, v4 clamp\n  v_sad_u32 v4, v{51+4*k}, s61, v4 clamp")
    e("  v_cmp_ne_u32 vcc, 0, v4\n  s_cbranch_vccnz L_g2\nL_g2x:\n  s_waitcnt vmcnt(0)")
    e("  v_mov_b32 v84, v80")
    allred_inrow("v_max_f32", 84, [4, 2, 1])
    e(f"  v_sub_f32 v80, v80, v84\n  v_mul_f32 v80, {hex(LOG2E)}, v80\n  v_exp_f32 v80, v80\n  s_nop 0\n  v_mul_f32 v82, v80, v82")
    allred_inrow("v_add_f32", 82, [4, 2, 1])
    e("  v_rcp_f32 v82, v82\n  s_nop 0\n  v_mul_f32 v80, v80, v82\n  s_nop 0")
    for k in range(8): e(f"  v_readlane_b32 s{48+k}, v80, {k}")
    e("  s_nop 1\n  v_mul_f32 v8, s48, v48\n  v_mul_f32 v10, s48, v50")
    for k in range(1, 8): e(f"  v_fmac_f32 v8, s{48+k}, v{48+4*k}\n  v_fmac_f32 v10, s{48+k}, v{50+4*k}")
    e(f"  v_cvt_pk_bf16_f32 v6, v8, v8\n  v_cvt_pk_bf16_f32 v7, v10, v10\n  ds_write_b64 v19, v[6:7] offset:{L_OP}\n  s_waitcnt lgkmcnt(0)\n  s_barrier")
    e("  v_lshrrev_b32 v4, 1, v0\n  v_lshlrev_b32 v4, 10, v4\n  v_and_b32 v5, 1, v0\n  v_lshl_add_u32 v4, v5, 4, v4")
    e(f"  s_mul_i32 s32, s28, 20480\n  s_lshl_b32 s33, s27, 5\n  s_add_u32 s33, s33, s32\n  s_add_u32 s33, s33, {X3}")
    e("  s_barrier")
    for k in range(4): e(f"  ds_read_b64 v[{32+2*k}:{33+2*k}], v19 offset:{L_YW + 512*k}")
    e("  s_waitcnt lgkmcnt(2)\n  v_add_f32 v8, v32, v34\n  v_add_f32 v10, v33, v35\n  s_waitcnt lgkmcnt(0)\n  v_add_f32 v8, v8, v36\n  v_add_f32 v10, v10, v37\n  v_add_f32 v8, v8, v38\n  v_add_f32 v10, v10, v39")
    e("  v_cmp_gt_u32 vcc, 40, v0\n  s_and_saveexec_b64 s[62:63], vcc\n  buffer_store_dwordx4 v[8:11], v4, s[36:39], s33 offen sc1\n  s_mov_b64 exec, s[62:63]")
    e("  s_cmp_ge_u32 s27, 20\n  s_cbranch_scc1 L_Aend")
    e(f"  s_lshl_b32 s33, s27, 10\n  s_add_u32 s33, s33, s32\n  s_add_u32 s33, s33, {X3}\n  s_mov_b32 s71, {SPIN_CAP}")
    srd(40, 20, 1280)
    e("L_g3:")
    e("  buffer_load_dwordx4 v[48:51], v17, s[36:39], s33 offen sc1")
    e("  s_sub_u32 s71, s71, 1\n  s_cbranch_scc1 L_g3x\n  s_waitcnt vmcnt(0)\n  v_xor_b32 v4, s60, v49\n  v_xor_b32 v5, s61, v51\n  v_or_b32 v4, v4, v5")
    e("  v_cmp_ne_u32 vcc, 0, v4\n  s_cbranch_vccnz L_g3\nL_g3x:\n  s_waitcnt vmcnt(0)")
    for r in (2, 4, 8):
        e(f"  v_add_f32_dpp v48, v48, v48 row_ror:{r} row_mask:0xf bank_mask:0xf\n  v_add_f32_dpp v50, v50, v50 row_ror:{r} row_mask:0xf bank_mask:0xf\n  s_nop 0")
    e("  v_mov_b32 v49, v48\n  v_mov_b32 v51, v50\n  s_nop 0\n  v_permlane16_swap_b32 v48, v49\n  v_permlane16_swap_b32 v50, v51\n  v_add_f32 v48, v48, v49\n  v_add_f32 v50, v50, v51")
    e("  v_mov_b32 v49, v48\n  v_mov_b32 v51, v50\n  s_nop 0\n  v_permlane32_swap_b32 v48, v49\n  v_permlane32_swap_b32 v50, v51\n  v_add_f32 v48, v48, v49\n  v_add_f32 v50, v50, v51")
    e("  v_lshlrev_b32 v4, 16, v1\n  v_and_b32 v5, 0xffff0000, v1\n  v_add_f32 v48, v48, v4\n  v_add_f32 v50, v50, v5\n  v_cvt_pk_bf16_f32 v48, v48, v50")
    e("  s_lshl_b32 s33, s27, 3\n  s_add_u32 s33, s33, s31\n  v_lshlrev_b32 v4, 2, v0\n  s_mov_b64 exec, 3\n  buffer_store_dword v48, v4, s[40:43], s33 offen")
    e(f"  s_cmp_lg_u32 s29, 0\n  s_cbranch_scc1 L_Aend\n  s_add_u32 s30, s30, 1\n  v_mov_b32 v5, s30\n  s_mov_b64 exec, 1\n  buffer_store_dword v5, v4, s[36:39], 0 offen offset:{EPOCH_OFF} sc1")
    e("L_Aend:")
    stamp(7)
    write_stamps(8)
    e("  s_endpgm")

    e("L_B1:")
    e("  v_and_b32 v5, 7, v2\n  v_lshl_add_u32 v18, v5, 6, v4")
    e("  v_lshrrev_b32 v5, 3, v2\n  v_lshl_add_u32 v5, v3, 1, v5\n  v_mul_u32_u24 v5, 40, v5\n  v_add_u32 v5, s35, v5")
    for k in range(5): e(f"  ds_read_b64 v[{20+2*k}:{21+2*k}], v5 offset:{8*k}")
    e("  s_waitcnt lgkmcnt(0)")
    for t in range(10):
        a = 40 if t % 2 == 0 else 44
        ands(a, 20 + t)
        e(f"  s_waitcnt vmcnt({9 - t})\n  s_nop 0")
        e(f"  v_mfma_f32_16x16x32_bf16 v[4:7], v[{a}:{a+3}], v[{48+4*t}:{51+4*t}], {'0' if t == 0 else 'v[4:7]'}")
    e("  v_mov_b32 v9, s60\n  v_mov_b32 v11, s61\n  s_lshl_b32 s32, s29, 9\n  s_add_u32 s32, s32, %d\n  s_nop 4" % X1H)
    for r in range(4): e(f"  v_mov_b32_dpp v{20+r}, v{4+r} row_ror:8 row_mask:0xf bank_mask:0xf")
    for r in range(4): e(f"  v_mov_b32 v{24+r}, v{20+r}")
    e("  s_nop 1")
    for r in range(4): e(f"  v_permlane32_swap_b32 v{20+r}, v{24+r}")
    for r in range(4): e(f"  v_cndmask_b32 v{20+r}, v{24+r}, v{20+r}, s[64:65]")
    for r in range(4): e(f"  v_add_f32 v{4+r}, v{4+r}, v{20+r}")
    e("  v_cndmask_b32 v8, v4, v6, s[64:65]\n  v_cndmask_b32 v10, v5, v7, s[64:65]")
    e("  s_mov_b32 exec_lo, 0x00ff00ff\n  s_mov_b32 exec_hi, 0xff00ff00")
    e("  buffer_store_dwordx4 v[8:11], v18, s[36:39], s32 offen sc1")
    stamp(4)
    write_stamps(8)
    e("  s_endpgm")

    e("L_KV:")
    e("  s_sub_u32 s31, s26, 2")
    srd(40, 6, SIZES["k"]); srd(44, 8, SIZES["v"])
    e("  s_lshl_b32 s32, s27, 20\n  s_lshl_b32 s33, s28, 15\n  s_add_u32 s32, s32, s33\n  s_lshl_b32 s33, s31, 13\n  s_add_u32 s32, s32, s33\n  s_add_u32 s32, s32, 786432\n  s_add_u32 s33, s32, 4096")
    e("  v_lshlrev_b32 v4, 4, v3\n  v_lshl_add_u32 v5, v2, 8, v4\n  v_lshl_add_u32 v6, v3, 10, v16")
    e("  s_barrier")
    stamp(1)
    for t in range(8): e(f"  buffer_load_dwordx4 v[{48+4*t}:{51+4*t}], v5, s[40:43], s{32 + t // 4} offen offset:{(t % 4) * 64} {ldflags}")
    for t in range(8): e(f"  buffer_load_dwordx4 v[{80+4*t}:{83+4*t}], v6, s[44:47], s{32 + t // 4} offen offset:{(t % 4) * 256} {ldflags}")
    signal_add(F_KV)
    stamp(2)
    spin_lds(F_Q, 1)
    for k in range(4): e(f"  ds_read_b128 v[{20+4*k}:{23+4*k}], v4 offset:{L_Q + 64*k}")
    e("  s_waitcnt lgkmcnt(0)")
    stamp(3)
    for t in range(8):
        d = 36 + 4 * (t // 4)
        e(f"  s_waitcnt vmcnt({15 - t})")
        e(f"  v_mfma_f32_16x16x32_bf16 v[{d}:{d+3}], v[{48+4*t}:{51+4*t}], v[{20+4*(t%4)}:{23+4*(t%4)}], {'0' if t % 4 == 0 else f'v[{d}:{d+3}]'}")
    e(f"  s_mov_b32 s34, {hex(SCALE)}\n  s_mov_b32 s35, {hex(LOG2E)}\n  s_nop 6")
    stamp(4)
    for k in range(0, 8, 2):
        a, b = 36 + k, 37 + k
        e(f"  v_cvt_pk_bf16_f32 v{a}, v{a}, v{b}\n  v_and_b32 v{b}, 0xffff0000, v{a}\n  v_lshlrev_b32 v{a}, 16, v{a}\n  v_mul_f32 v{a}, s34, v{a}\n  v_mul_f32 v{b}, s34, v{b}")
        e(f"  v_cvt_pk_bf16_f32 v{a}, v{a}, v{b}\n  v_and_b32 v{b}, 0xffff0000, v{a}\n  v_lshlrev_b32 v{a}, 16, v{a}")
    e("  v_max3_f32 v10, v36, v37, v38\n  v_max3_f32 v10, v10, v39, v40\n  v_max3_f32 v10, v10, v41, v42\n  v_max_f32 v10, v10, v43")
    allred_rows("v_max_f32", 10, 7)
    for k in range(8): e(f"  v_sub_f32 v{36+k}, v{36+k}, v10\n  v_mul_f32 v{36+k}, s35, v{36+k}\n  v_exp_f32 v{36+k}, v{36+k}")
    e("  s_nop 0\n  v_add_f32 v11, v36, v37")
    for k in range(2, 8): e(f"  v_add_f32 v11, v11, v{36+k}")
    allred_rows("v_add_f32", 11, 7)
    e(f"  s_lshl_b32 s34, s31, 3\n  v_mov_b32 v7, s34\n  s_mov_b64 exec, 1\n  ds_write_b64 v7, v[10:11] offset:{L_ML}\n  s_mov_b64 exec, -1")
    signal_add(F_ML)
    for k in range(8):
        e(f"  v_cvt_pk_bf16_f32 v{36+k}, v{36+k}, v{36+k}")
        ands(48 + 4 * k, 36 + k)
    stamp(5)
    for t in range(8):
        e(f"  s_waitcnt vmcnt({7 - t})")
        e(f"  v_mfma_f32_16x16x32_bf16 v[20:23], v[{48+4*t}:{51+4*t}], v[{80+4*t}:{83+4*t}], {'0' if t == 0 else 'v[20:23]'}")
    e(f"  s_lshl_b32 s34, s31, 9\n  v_lshl_add_u32 v7, v2, 5, v4\n  v_add_u32 v7, s34, v7\n  s_mov_b32 exec_hi, 0\n  s_nop 3")
    e(f"  ds_write_b128 v7, v[20:23] offset:{L_OW}")
    signal_add(F_O)
    stamp(6)
    write_stamps(8)
    e("  s_endpgm")

    e("L_W:")
    e("  s_sub_u32 s31, s26, 6")
    srd(40, 18, SIZES["w2"]); srd(44, 12, SIZES["wo"])
    e("  v_cmp_gt_u32 vcc, 10, v2\n  v_mov_b32 v4, 0x7f000000\n  s_nop 0\n  v_cndmask_b32 v4, v4, v16, vcc")
    e("  v_mul_u32_u24 v5, 5120, v3\n  v_add_u32 v5, v5, v4\n  v_mul_u32_u24 v6, 10240, v3\n  v_add_u32 v6, v6, v4")
    e("  s_mul_i32 s34, s28, 160")
    e("  s_lshl_b32 s32, s27, 2\n  s_add_u32 s32, s32, s31\n  s_mul_i32 s33, s32, 40960\n  s_mul_i32 s32, s32, 20480\n  s_add_u32 s32, s32, s34\n  s_add_u32 s33, s33, s34\n  s_add_u32 s35, s33, 5120")
    e("  s_cmp_ge_u32 s27, 27\n  s_cselect_b32 s32, 0x7f000000, s32")
    e("  s_barrier")
    spin_lds(F_KV, 4)
    stamp(1)
    for t in range(4): e(f"  buffer_load_dwordx4 v[{48+4*t}:{51+4*t}], v5, s[40:43], s32 offen offset:{t * 1280} {ldflags}")
    for t in range(8): e(f"  buffer_load_dwordx4 v[{64+4*t}:{67+4*t}], v6, s[44:47], s{33 if t < 4 else 35} offen offset:{(t % 4) * 1280} {ldflags}")
    stamp(2)
    spin_lds(F_Q, 1)
    e(f"  s_lshl_b32 s34, s31, 6\n  v_lshl_add_u32 v7, v3, 4, s34\n  ds_read_b128 v[20:23], v7 offset:{L_HP}\n  s_waitcnt lgkmcnt(0)")
    for t in range(4):
        a = 40 if t % 2 == 0 else 44
        ands(a, 20 + t)
        e(f"  s_waitcnt vmcnt({11 - t})\n  s_nop 0")
        e(f"  v_mfma_f32_16x16x32_bf16 v[36:39], v[{a}:{a+3}], v[{48+4*t}:{51+4*t}], {'0' if t == 0 else 'v[36:39]'}")
    e(f"  s_lshl_b32 s34, s31, 7\n  v_lshl_add_u32 v7, v3, 5, s34")
    e(f"  s_lshl_b32 s34, s31, 9\n  v_lshlrev_b32 v10, 4, v3\n  v_lshl_add_u32 v10, v2, 5, v10\n  v_add_u32 v10, s34, v10")
    stamp(3)
    e("  s_barrier")
    e(f"  ds_read_b128 v[20:23], v7 offset:{L_OP}\n  ds_read_b128 v[24:27], v7 offset:{L_OP + 16}\n  s_waitcnt lgkmcnt(1)")
    stamp(4)
    for t in range(8):
        a = 40 if t % 2 == 0 else 44
        if t == 4: e("  s_waitcnt lgkmcnt(0)")
        ands(a, 20 + t)
        e(f"  s_waitcnt vmcnt({7 - t})\n  s_nop 0")
        e(f"  v_mfma_f32_16x16x32_bf16 v[36:39], v[{a}:{a+3}], v[{64+4*t}:{67+4*t}], v[36:39]")
    e("  s_mov_b32 exec_hi, 0\n  s_nop 6")
    e(f"  ds_write_b128 v10, v[36:39] offset:{L_YW}\n  s_waitcnt lgkmcnt(0)\n  s_barrier")
    stamp(5)
    write_stamps(8)
    e("L_end:")
    e(footer(128))
    open(fname, "w").write("\n".join(o))

if __name__ == "__main__":
    gen("v1_nt.s", ldflags="nt")
    gen("v1.s", ldflags="")
    gen("v1_nt_st.s", ldflags="nt", stamps=True)
    gen("v1_st.s", ldflags="", stamps=True)
```

```python
import sys
from common import *

EPOCH_OFF = 0
X1Q = 0x1000
X1H = X1Q + 256 * 1024
X2O = X1H + 256 * 512
X2ML = X2O + 256 * 1024
X3 = X2ML + 4096
F_KV, F_Q, F_ML, F_O = 0, 4, 8, 12
L_Q = 0x100
L_HP = 0x200
L_OP = 0x300
L_ML = 0x500
L_OW = 0x600
L_YW = 0xE00
L_XP = 0x1600
LDS_BYTES = 0x1A00
LOG2E = 0x3FB8AA3B
SCALE = 0x3DB504F3
SPIN_CAP = 1 << 18

def gen(fname, ldflags="nt", stamps=False, lds=None, bar0=True, pad=0):
    o = []
    def e(s): o.append(s)
    nst = [0]
    def stamp(k):
        if stamps: e(f"  s_memrealtime s[{80 + 2 * k}:{81 + 2 * k}]")
    def write_stamps(n):
        if not stamps: return
        e("  s_waitcnt lgkmcnt(0)")
        e(f"  s_mul_i32 s70, s2, 10\n  s_add_u32 s70, s70, s26\n  s_lshl_b32 s70, s70, 6\n  s_add_u32 s70, s70, {STAMP_OFF}")
        e("  s_mov_b64 exec, 1\n  v_mov_b32 v8, 0")
        for k in range(0, 8, 2):
            e(f"  v_mov_b32 v4, s{80+2*k}\n  v_mov_b32 v5, s{81+2*k}\n  v_mov_b32 v6, s{82+2*k}\n  v_mov_b32 v7, s{83+2*k}")
            e(f"  buffer_store_dwordx4 v[4:7], v8, s[36:39], s70 offen offset:{8*k}\n  s_nop 1")
    def srd(d, src, size):
        e(f"  s_mov_b32 s{d}, s{src}\n  s_mov_b32 s{d+1}, s{src+1}\n  s_mov_b32 s{d+2}, {size}\n  s_mov_b32 s{d+3}, 0x20000")
    lab = [0]
    def spin_lds(flag, n):
        lab[0] += 1; L = f"L_spin{lab[0]}"
        e(f"  s_mov_b32 s71, {SPIN_CAP}\n  v_mov_b32 v9, 0")
        e(f"{L}:\n  ds_read_b32 v8, v9 offset:{flag}\n  s_sub_u32 s71, s71, 1\n  s_cbranch_scc1 {L}_x\n  s_waitcnt lgkmcnt(0)\n  v_readfirstlane_b32 s72, v8\n  s_cmp_ge_u32 s72, {n}\n  s_cbranch_scc0 {L}\n{L}_x:\n  s_waitcnt lgkmcnt(0)")
    def signal_add(flag):
        e(f"  s_mov_b64 exec, 1\n  v_mov_b32 v8, 1\n  v_mov_b32 v9, 0\n  ds_add_u32 v9, v8 offset:{flag}\n  s_mov_b64 exec, -1")
    def allred_rows(op, v, t):
        e(f"  v_mov_b32 v{t}, v{v}\n  s_nop 1\n  v_permlane16_swap_b32 v{v}, v{t}\n  {op} v{v}, v{v}, v{t}\n  v_mov_b32 v{t}, v{v}\n  s_nop 1\n  v_permlane32_swap_b32 v{v}, v{t}\n  {op} v{v}, v{v}, v{t}")
    def allred_inrow(op, v, rors):
        for r in rors:
            e(f"  s_nop 1\n  {op}_dpp v{v}, v{v}, v{v} row_ror:{r} row_mask:0xf bank_mask:0xf")
    def bf16r(d, s):
        e(f"  v_cvt_pk_bf16_f32 v{d}, v{s}, v{s}\n  v_and_b32 v{d}, 0xffff0000, v{d}")
    def ands(a, pp):
        for r in range(4): e(f"  v_and_b32 v{a+r}, v{pp}, v{12+r}")

    e(header(256, 640, lds if lds else LDS_BYTES))
    e("  s_cmp_ge_u32 s2, 256\n  s_cbranch_scc1 L_end")
    if stamps:
        for k in range(8): e(f"  s_mov_b64 s[{80+2*k}:{81+2*k}], 0")
    stamp(0)
    if pad: e("  s_memrealtime s[76:77]")
    e("  s_load_dwordx16 s[4:19], s[0:1], 0\n  s_load_dwordx4 s[20:23], s[0:1], 64\n  s_load_dwordx2 s[24:25], s[0:1], 80")
    e("  v_lshrrev_b32 v1, 6, v0\n  v_and_b32 v0, 63, v0\n  v_and_b32 v2, 15, v0\n  v_readfirstlane_b32 s26, v1\n  v_lshrrev_b32 v3, 4, v0")
    e("  s_and_b32 s27, s2, 7\n  s_lshr_b32 s28, s2, 3\n  s_lshr_b32 s29, s28, 3\n  s_lshl_b32 s27, s27, 2\n  s_add_u32 s27, s27, s29\n  s_and_b32 s28, s28, 7")
    e("  s_lshl_b32 s29, s27, 3\n  s_add_u32 s29, s29, s28")
    e("  v_and_b32 v4, 1, v0\n  v_lshlrev_b32 v4, 4, v4\n  v_mov_b32 v5, 0xffff\n  v_lshlrev_b32 v5, v4, v5")
    e("  v_bfe_u32 v4, v0, 1, 2")
    for r in range(4):
        e(f"  v_cmp_eq_u32 vcc, {r}, v4\n  s_nop 1\n  v_cndmask_b32 v{12+r}, 0, v5, vcc")
    e("  v_lshlrev_b32 v16, 4, v2")
    e("  v_lshlrev_b32 v17, 4, v0")
    e("  s_waitcnt lgkmcnt(0)")
    srd(36, 24, WS)
    e("  s_cmp_ge_u32 s26, 6\n  s_cbranch_scc1 L_W\n  s_cmp_ge_u32 s26, 2\n  s_cbranch_scc1 L_KV")

    e(f"  s_load_dword s30, s[24:25], {EPOCH_OFF}")
    srd(40, 4, 1280)
    e("  buffer_load_dwordx4 v[20:23], v17, s[40:43], 0 offen\n  buffer_load_dwordx4 v[24:27], v17, s[40:43], 0 offen offset:1024")
    e("  s_mul_i32 s31, s28, 160\n  v_lshlrev_b32 v4, 2, v0\n  buffer_load_dword v28, v4, s[40:43], s31 offen")
    e("  s_cmp_eq_u32 s26, 1\n  s_cbranch_scc1 L_B0")
    srd(44, 10, SIZES["wq"])
    e("  v_mul_u32_u24 v5, 163840, v3\n  v_add_u32 v5, v5, v16")
    e("  s_mul_i32 s32, s28, 655360\n  s_lshl_b32 s33, s27, 8\n  s_add_u32 s32, s32, s33\n  s_movk_i32 s34, 0x2000")
    for t in range(20):
        e(f"  buffer_load_dwordx4 v[{48+4*t}:{51+4*t}], v5, s[44:47], s32 offen {ldflags}")
        if t < 19: e("  s_add_u32 s32, s32, s34")
    e("  s_lshl_b32 s33, s27, 3\n  s_add_u32 s33, s33, s31\n  v_and_b32 v4, 1, v0\n  v_lshlrev_b32 v4, 2, v4\n  buffer_load_dword v1, v4, s[40:43], s33 offen")
    e("  v_mov_b32 v4, 0\n  v_mov_b32 v6, 0\n  v_mov_b32 v7, 0\n  v_mov_b32 v8, 0\n  v_mov_b32 v9, 0\n  ds_write_b128 v4, v[6:9]\n  s_waitcnt lgkmcnt(0)")
    e(f"  s_movk_i32 s35, {L_XP}\n  s_branch L_AB1")
    e("L_B0:")
    srd(44, 16, SIZES["w1"])
    e("  v_lshrrev_b32 v4, 3, v2\n  v_lshl_add_u32 v4, v3, 1, v4\n  v_mul_u32_u24 v5, 34560, v4\n  v_and_b32 v6, 7, v2\n  v_lshl_add_u32 v5, v6, 4, v5")
    e("  s_mul_i32 s32, s28, 276480\n  s_lshl_b32 s33, s27, 7\n  s_add_u32 s32, s32, s33\n  s_cmp_ge_u32 s27, 27\n  s_cselect_b32 s32, 0x7f000000, s32\n  s_movk_i32 s34, 3456")
    for t in range(10):
        e(f"  buffer_load_dwordx4 v[{48+4*t}:{51+4*t}], v5, s[44:47], s32 offen {ldflags}")
        if t < 9: e("  s_add_u32 s32, s32, s34")
    e(f"  s_movk_i32 s35, {L_XP + 512}")
    e("L_AB1:")
    e("  s_barrier")
    stamp(1)
    e("  s_waitcnt lgkmcnt(0)")
    e("  s_mul_i32 s60, s30, 0x9E3779B1\n  s_add_u32 s60, s60, 0x7F4A7C15\n  s_xor_b32 s61, s30, 0x5bd1e995\n  s_mul_i32 s61, s61, 0x85EBCA6B\n  s_add_u32 s61, s61, 0x1B873593")
    e("  s_cmp_eq_u32 s26, 1\n  s_cbranch_scc1 L_Bw\n  s_waitcnt vmcnt(21)\n  s_branch L_ABw\nL_Bw:\n  s_waitcnt vmcnt(10)\nL_ABw:")
    stamp(2)
    for k in range(8):
        e(f"  v_lshlrev_b32 v{30+2*k}, 16, v{20+k}\n  v_and_b32 v{31+2*k}, 0xffff0000, v{20+k}")
    e("  v_add_f32 v4, v30, v31")
    for k in range(2, 16): e(f"  v_add_f32 v4, v4, v{30+k}")
    allred_inrow("v_add_f32", 4, [8, 4, 2, 1]); allred_rows("v_add_f32", 4, 5)
    e("  v_mul_f32 v4, 0x3ACCCCCD, v4")
    for k in range(16): e(f"  v_sub_f32 v{30+k}, v{30+k}, v4")
    e("  v_mul_f32 v6, v38, v38")
    for k in range(9, 16): e(f"  v_fmac_f32 v6, v{30+k}, v{30+k}")
    e("  v_cmp_gt_u32 vcc, 16, v0\n  s_nop 1\n  v_cndmask_b32 v6, 0, v6, vcc")
    for k in range(8): e(f"  v_fmac_f32 v6, v{30+k}, v{30+k}")
    allred_inrow("v_add_f32", 6, [8, 4, 2, 1]); allred_rows("v_add_f32", 6, 5)
    e("  v_mul_f32 v6, 0x3ACCCCCD, v6")
    bf16r(6, 6)
    e("  v_add_f32 v6, 0x3727C5AC, v6")
    bf16r(6, 6)
    e("  v_sqrt_f32 v7, v6\n  s_nop 0\n  v_rcp_f32 v5, v7\n  v_fma_f32 v10, -v7, v7, v6\n  v_mul_f32 v5, 0.5, v5\n  v_fmac_f32 v7, v10, v5")
    bf16r(7, 7)
    bf16r(4, 4)
    e("  v_rcp_f32 v5, v7")
    e("  v_lshlrev_b32 v30, 16, v28\n  v_and_b32 v31, 0xffff0000, v28\n  v_sub_f32 v30, v30, v4\n  v_sub_f32 v31, v31, v4")
    e("  v_cvt_pk_bf16_f32 v30, v30, v31\n  v_and_b32 v31, 0xffff0000, v30\n  v_lshlrev_b32 v30, 16, v30")
    for k in (30, 31):
        e(f"  v_mul_f32 v32, v{k}, v5\n  v_fma_f32 v33, -v32, v7, v{k}\n  v_fma_f32 v{k}, v33, v5, v32\n  v_cvt_pk_bf16_f32 v{k}, v{k}, v{k}")
    e("  v_lshl_add_u32 v4, v0, 3, s35\n  v_cmp_gt_u32 vcc, 40, v0\n  s_and_saveexec_b64 s[62:63], vcc\n  ds_write_b64 v4, v[30:31]\n  s_mov_b64 exec, s[62:63]")
    e("  s_mov_b32 s64, 0\n  s_mov_b32 s65, -1")
    e("  v_and_b32 v4, 1, v3\n  v_lshlrev_b32 v4, 5, v4\n  v_lshrrev_b32 v5, 1, v3\n  v_lshl_add_u32 v4, v5, 4, v4")
    e("  s_cmp_eq_u32 s26, 1\n  s_cbranch_scc1 L_B1")

    e("  v_lshl_add_u32 v18, v2, 6, v4")
    e("  v_mul_u32_u24 v5, 80, v3\n  v_add_u32 v5, s35, v5")
    for k in range(5): e(f"  ds_read_b128 v[{20+4*k}:{23+4*k}], v5 offset:{16*k}")
    e("  s_waitcnt lgkmcnt(0)")
    stamp(3)
    for t in range(20):
        a = 40 if t % 2 == 0 else 44
        ands(a, 20 + t)
        e(f"  s_waitcnt vmcnt({20 - t})\n  s_nop 0")
        e(f"  v_mfma_f32_16x16x32_bf16 v[4:7], v[{a}:{a+3}], v[{48+4*t}:{51+4*t}], {'0' if t == 0 else 'v[4:7]'}")
    e("  v_mov_b32 v9, s60\n  v_mov_b32 v11, s61\n  s_lshl_b32 s32, s29, 10\n  s_add_u32 s32, s32, %d\n  s_nop 4" % X1Q)
    e("  v_cndmask_b32 v8, v4, v6, s[64:65]\n  v_cndmask_b32 v10, v5, v7, s[64:65]")
    e("  buffer_store_dwordx4 v[8:11], v18, s[36:39], s32 offen sc1")
    stamp(4)
    e(f"  s_lshl_b32 s32, s27, 13\n  s_add_u32 s32, s32, {X1Q}\n  s_add_u32 s33, s32, 4096\n  s_lshl_b32 s34, s27, 12\n  s_add_u32 s34, s34, {X1H}")
    e(f"  s_mov_b32 s71, {SPIN_CAP}")
    e("L_g1:")
    for k in range(8): e(f"  buffer_load_dwordx4 v[{48+4*k}:{51+4*k}], v17, s[36:39], s{32 + k // 4} offen offset:{(k % 4) * 1024} sc1")
    for k in range(4): e(f"  buffer_load_dwordx4 v[{80+4*k}:{83+4*k}], v17, s[36:39], s34 offen offset:{k * 1024} sc1")
    e("  s_sub_u32 s71, s71, 1\n  s_cbranch_scc1 L_g1x\n  v_mov_b32 v4, 0")
    for k in range(12):
        e(f"  s_waitcnt vmcnt({11 - k})\n  v_sad_u32 v4, v{49+4*k}, s60, v4 clamp\n  v_sad_u32 v4, v{51+4*k}, s61, v4 clamp")
    e("  v_cmp_ne_u32 vcc, 0, v4\n  s_cbranch_vccnz L_g1\nL_g1x:\n  s_waitcnt vmcnt(0)")
    for k in range(1, 8): e(f"  v_add_f32 v48, v48, v{48+4*k}\n  v_add_f32 v50, v50, v{50+4*k}")
    for k in range(1, 4): e(f"  v_add_f32 v80, v80, v{80+4*k}\n  v_add_f32 v82, v82, v{82+4*k}")
    e(f"  v_cvt_pk_bf16_f32 v48, v48, v50\n  v_lshlrev_b32 v4, 2, v0\n  ds_write_b32 v4, v48 offset:{L_Q}")
    e("  v_mov_b32 v81, v80\n  v_mov_b32 v83, v82\n  s_nop 1\n  v_permlane32_swap_b32 v80, v81\n  v_permlane32_swap_b32 v82, v83\n  v_add_f32 v80, v80, v81\n  v_add_f32 v82, v82, v83")
    for k in (80, 82):
        bf16r(k, k)
        e(f"  v_mul_f32 v84, {hex(LOG2E | 0x80000000)}, v{k}\n  v_exp_f32 v84, v84\n  s_nop 0\n  v_add_f32 v84, 1.0, v84\n  v_rcp_f32 v85, v84\n  s_nop 0\n  v_mul_f32 v{k}, v{k}, v85\n  v_cvt_pk_bf16_f32 v{k}, v{k}, v{k}")
    e(f"  v_mov_b32 v81, v82\n  v_lshlrev_b32 v19, 3, v0\n  s_mov_b32 exec_hi, 0\n  ds_write_b64 v19, v[80:81] offset:{L_HP}\n  s_mov_b64 exec, -1")
    signal_add(F_Q)
    stamp(5)
    spin_lds(F_ML, 4)
    e(f"  v_mov_b32 v4, 0\n  ds_read_b128 v[20:23], v4 offset:{L_ML}\n  ds_read_b128 v[24:27], v4 offset:{L_ML+16}\n  s_waitcnt lgkmcnt(0)")
    e("  v_max_f32 v28, v20, v22\n  v_max3_f32 v28, v28, v24, v26")
    for k in range(4):
        e(f"  v_sub_f32 v{20+2*k}, v{20+2*k}, v28\n  v_mul_f32 v{20+2*k}, {hex(LOG2E)}, v{20+2*k}\n  v_exp_f32 v{20+2*k}, v{20+2*k}")
    e("  s_nop 0\n  v_mul_f32 v10, v20, v21\n  v_fmac_f32 v10, v22, v23\n  v_fmac_f32 v10, v24, v25\n  v_fmac_f32 v10, v26, v27\n  v_mov_b32 v8, v28\n  v_mov_b32 v9, s60")
    e(f"  s_lshl_b32 s32, s29, 4\n  s_add_u32 s32, s32, {X2ML}\n  v_mov_b32 v30, 0\n  s_mov_b64 exec, 1\n  buffer_store_dwordx4 v[8:11], v30, s[36:39], s32 offen sc1\n  s_mov_b64 exec, -1")
    spin_lds(F_O, 4)
    for k in range(4): e(f"  ds_read_b64 v[{32+2*k}:{33+2*k}], v19 offset:{L_OW + 512*k}")
    e("  v_mov_b32 v9, s60\n  s_waitcnt lgkmcnt(3)\n  v_mul_f32 v8, v20, v32\n  v_mul_f32 v10, v20, v33")
    for k in range(1, 4): e(f"  s_waitcnt lgkmcnt({3-k})\n  v_fmac_f32 v8, v{20+2*k}, v{32+2*k}\n  v_fmac_f32 v10, v{20+2*k}, v{33+2*k}")
    e(f"  s_lshl_b32 s32, s29, 10\n  s_add_u32 s32, s32, {X2O}\n  buffer_store_dwordx4 v[8:11], v17, s[36:39], s32 offen sc1")
    stamp(6)
    e(f"  s_lshl_b32 s32, s27, 13\n  s_add_u32 s32, s32, {X2O}\n  s_add_u32 s33, s32, 4096\n  s_lshl_b32 s34, s27, 7\n  s_add_u32 s34, s34, {X2ML}")
    e(f"  v_and_b32 v5, 7, v0\n  v_lshlrev_b32 v5, 4, v5\n  s_mov_b32 s71, {SPIN_CAP}")
    e("L_g2:")
    e("  buffer_load_dwordx4 v[80:83], v5, s[36:39], s34 offen sc1")
    for k in range(8): e(f"  buffer_load_dwordx4 v[{48+4*k}:{51+4*k}], v17, s[36:39], s{32 + k // 4} offen offset:{(k % 4) * 1024} sc1")
    e("  s_sub_u32 s71, s71, 1\n  s_cbranch_scc1 L_g2x\n  v_mov_b32 v4, 0")
    e("  s_waitcnt vmcnt(8)\n  v_sad_u32 v4, v81, s60, v4 clamp\n  v_sad_u32 v4, v83, s61, v4 clamp")
    for k in range(8):
        e(f"  s_waitcnt vmcnt({7 - k})\n  v_sad_u32 v4, v{49+4*k}, s60, v4 clamp\n  v_sad_u32 v4, v{51+4*k}, s61, v4 clamp")
    e("  v_cmp_ne_u32 vcc, 0, v4\n  s_cbranch_vccnz L_g2\nL_g2x:\n  s_waitcnt vmcnt(0)")
    e("  v_mov_b32 v84, v80")
    allred_inrow("v_max_f32", 84, [4, 2, 1])
    e(f"  v_sub_f32 v80, v80, v84\n  v_mul_f32 v80, {hex(LOG2E)}, v80\n  v_exp_f32 v80, v80\n  s_nop 0\n  v_mul_f32 v82, v80, v82")
    allred_inrow("v_add_f32", 82, [4, 2, 1])
    e("  v_rcp_f32 v82, v82\n  s_nop 0\n  v_mul_f32 v80, v80, v82\n  s_nop 0")
    for k in range(8): e(f"  v_readlane_b32 s{48+k}, v80, {k}")
    e("  s_nop 1\n  v_mul_f32 v8, s48, v48\n  v_mul_f32 v10, s48, v50")
    for k in range(1, 8): e(f"  v_fmac_f32 v8, s{48+k}, v{48+4*k}\n  v_fmac_f32 v10, s{48+k}, v{50+4*k}")
    e(f"  v_cvt_pk_bf16_f32 v6, v8, v8\n  v_cvt_pk_bf16_f32 v7, v10, v10\n  ds_write_b64 v19, v[6:7] offset:{L_OP}\n  s_waitcnt lgkmcnt(0)\n  s_barrier")
    e("  v_lshrrev_b32 v4, 1, v0\n  v_lshlrev_b32 v4, 10, v4\n  v_and_b32 v5, 1, v0\n  v_lshl_add_u32 v4, v5, 4, v4")
    e(f"  s_mul_i32 s32, s28, 20480\n  s_lshl_b32 s33, s27, 5\n  s_add_u32 s33, s33, s32\n  s_add_u32 s33, s33, {X3}")
    e("  s_barrier")
    for k in range(4): e(f"  ds_read_b64 v[{32+2*k}:{33+2*k}], v19 offset:{L_YW + 512*k}")
    e("  s_waitcnt lgkmcnt(2)\n  v_add_f32 v8, v32, v34\n  v_add_f32 v10, v33, v35\n  s_waitcnt lgkmcnt(0)\n  v_add_f32 v8, v8, v36\n  v_add_f32 v10, v10, v37\n  v_add_f32 v8, v8, v38\n  v_add_f32 v10, v10, v39")
    e("  v_cmp_gt_u32 vcc, 40, v0\n  s_and_saveexec_b64 s[62:63], vcc\n  buffer_store_dwordx4 v[8:11], v4, s[36:39], s33 offen sc1\n  s_mov_b64 exec, s[62:63]")
    e("  s_cmp_ge_u32 s27, 20\n  s_cbranch_scc1 L_Aend")
    e(f"  s_lshl_b32 s33, s27, 10\n  s_add_u32 s33, s33, s32\n  s_add_u32 s33, s33, {X3}\n  s_mov_b32 s71, {SPIN_CAP}")
    srd(40, 20, 1280)
    e("L_g3:")
    e("  buffer_load_dwordx4 v[48:51], v17, s[36:39], s33 offen sc1")
    e("  s_sub_u32 s71, s71, 1\n  s_cbranch_scc1 L_g3x\n  s_waitcnt vmcnt(0)\n  v_xor_b32 v4, s60, v49\n  v_xor_b32 v5, s61, v51\n  v_or_b32 v4, v4, v5")
    e("  v_cmp_ne_u32 vcc, 0, v4\n  s_cbranch_vccnz L_g3\nL_g3x:\n  s_waitcnt vmcnt(0)")
    for r in (2, 4, 8):
        e(f"  v_add_f32_dpp v48, v48, v48 row_ror:{r} row_mask:0xf bank_mask:0xf\n  v_add_f32_dpp v50, v50, v50 row_ror:{r} row_mask:0xf bank_mask:0xf\n  s_nop 0")
    e("  v_mov_b32 v49, v48\n  v_mov_b32 v51, v50\n  s_nop 0\n  v_permlane16_swap_b32 v48, v49\n  v_permlane16_swap_b32 v50, v51\n  v_add_f32 v48, v48, v49\n  v_add_f32 v50, v50, v51")
    e("  v_mov_b32 v49, v48\n  v_mov_b32 v51, v50\n  s_nop 0\n  v_permlane32_swap_b32 v48, v49\n  v_permlane32_swap_b32 v50, v51\n  v_add_f32 v48, v48, v49\n  v_add_f32 v50, v50, v51")
    e("  v_lshlrev_b32 v4, 16, v1\n  v_and_b32 v5, 0xffff0000, v1\n  v_add_f32 v48, v48, v4\n  v_add_f32 v50, v50, v5\n  v_cvt_pk_bf16_f32 v48, v48, v50")
    e("  s_lshl_b32 s33, s27, 3\n  s_add_u32 s33, s33, s31\n  v_lshlrev_b32 v4, 2, v0\n  s_mov_b64 exec, 3\n  buffer_store_dword v48, v4, s[40:43], s33 offen")
    e(f"  s_cmp_lg_u32 s29, 0\n  s_cbranch_scc1 L_Aend\n  s_add_u32 s30, s30, 1\n  v_mov_b32 v5, s30\n  s_mov_b64 exec, 1\n  buffer_store_dword v5, v4, s[36:39], 0 offen offset:{EPOCH_OFF} sc1")
    e("L_Aend:")
    if pad:
        e(f"L_pad:\n  s_memrealtime s[78:79]\n  s_waitcnt lgkmcnt(0)\n  s_sub_u32 s78, s78, s76\n  s_cmp_lt_u32 s78, {pad}\n  s_cbranch_scc1 L_pad")
    stamp(7)
    write_stamps(8)
    e("  s_endpgm")

    e("L_B1:")
    e("  v_and_b32 v5, 7, v2\n  v_lshl_add_u32 v18, v5, 6, v4")
    e("  v_lshrrev_b32 v5, 3, v2\n  v_lshl_add_u32 v5, v3, 1, v5\n  v_mul_u32_u24 v5, 40, v5\n  v_add_u32 v5, s35, v5")
    for k in range(5): e(f"  ds_read_b64 v[{20+2*k}:{21+2*k}], v5 offset:{8*k}")
    e("  s_waitcnt lgkmcnt(0)")
    for t in range(10):
        a = 40 if t % 2 == 0 else 44
        ands(a, 20 + t)
        e(f"  s_waitcnt vmcnt({9 - t})\n  s_nop 0")
        e(f"  v_mfma_f32_16x16x32_bf16 v[4:7], v[{a}:{a+3}], v[{48+4*t}:{51+4*t}], {'0' if t == 0 else 'v[4:7]'}")
    e("  v_mov_b32 v9, s60\n  v_mov_b32 v11, s61\n  s_lshl_b32 s32, s29, 9\n  s_add_u32 s32, s32, %d\n  s_nop 4" % X1H)
    for r in range(4): e(f"  v_mov_b32_dpp v{20+r}, v{4+r} row_ror:8 row_mask:0xf bank_mask:0xf")
    for r in range(4): e(f"  v_mov_b32 v{24+r}, v{20+r}")
    e("  s_nop 1")
    for r in range(4): e(f"  v_permlane32_swap_b32 v{20+r}, v{24+r}")
    for r in range(4): e(f"  v_cndmask_b32 v{20+r}, v{24+r}, v{20+r}, s[64:65]")
    for r in range(4): e(f"  v_add_f32 v{4+r}, v{4+r}, v{20+r}")
    e("  v_cndmask_b32 v8, v4, v6, s[64:65]\n  v_cndmask_b32 v10, v5, v7, s[64:65]")
    e("  s_mov_b32 exec_lo, 0x00ff00ff\n  s_mov_b32 exec_hi, 0xff00ff00")
    e("  buffer_store_dwordx4 v[8:11], v18, s[36:39], s32 offen sc1")
    stamp(4)
    write_stamps(8)
    e("  s_endpgm")

    e("L_KV:")
    e("  s_sub_u32 s31, s26, 2")
    srd(40, 6, SIZES["k"]); srd(44, 8, SIZES["v"])
    e("  s_lshl_b32 s32, s27, 20\n  s_lshl_b32 s33, s28, 15\n  s_add_u32 s32, s32, s33\n  s_lshl_b32 s33, s31, 13\n  s_add_u32 s32, s32, s33\n  s_add_u32 s32, s32, 786432\n  s_add_u32 s33, s32, 4096")
    e("  v_lshlrev_b32 v4, 4, v3\n  v_lshl_add_u32 v5, v2, 8, v4\n  v_lshl_add_u32 v6, v3, 10, v16")
    e("  s_barrier")
    stamp(1)
    for t in range(8): e(f"  buffer_load_dwordx4 v[{48+4*t}:{51+4*t}], v5, s[40:43], s{32 + t // 4} offen offset:{(t % 4) * 64} {ldflags}")
    for t in range(8): e(f"  buffer_load_dwordx4 v[{80+4*t}:{83+4*t}], v6, s[44:47], s{32 + t // 4} offen offset:{(t % 4) * 256} {ldflags}")
    signal_add(F_KV)
    stamp(2)
    spin_lds(F_Q, 1)
    for k in range(4): e(f"  ds_read_b128 v[{20+4*k}:{23+4*k}], v4 offset:{L_Q + 64*k}")
    e("  s_waitcnt lgkmcnt(0)")
    stamp(3)
    for t in range(8):
        d = 36 + 4 * (t // 4)
        e(f"  s_waitcnt vmcnt({15 - t})")
        e(f"  v_mfma_f32_16x16x32_bf16 v[{d}:{d+3}], v[{48+4*t}:{51+4*t}], v[{20+4*(t%4)}:{23+4*(t%4)}], {'0' if t % 4 == 0 else f'v[{d}:{d+3}]'}")
    e(f"  s_mov_b32 s34, {hex(SCALE)}\n  s_mov_b32 s35, {hex(LOG2E)}\n  s_nop 6")
    stamp(4)
    for k in range(0, 8, 2):
        a, b = 36 + k, 37 + k
        e(f"  v_cvt_pk_bf16_f32 v{a}, v{a}, v{b}\n  v_and_b32 v{b}, 0xffff0000, v{a}\n  v_lshlrev_b32 v{a}, 16, v{a}\n  v_mul_f32 v{a}, s34, v{a}\n  v_mul_f32 v{b}, s34, v{b}")
        e(f"  v_cvt_pk_bf16_f32 v{a}, v{a}, v{b}\n  v_and_b32 v{b}, 0xffff0000, v{a}\n  v_lshlrev_b32 v{a}, 16, v{a}")
    e("  v_max3_f32 v10, v36, v37, v38\n  v_max3_f32 v10, v10, v39, v40\n  v_max3_f32 v10, v10, v41, v42\n  v_max_f32 v10, v10, v43")
    allred_rows("v_max_f32", 10, 7)
    for k in range(8): e(f"  v_sub_f32 v{36+k}, v{36+k}, v10\n  v_mul_f32 v{36+k}, s35, v{36+k}\n  v_exp_f32 v{36+k}, v{36+k}")
    e("  s_nop 0\n  v_add_f32 v11, v36, v37")
    for k in range(2, 8): e(f"  v_add_f32 v11, v11, v{36+k}")
    allred_rows("v_add_f32", 11, 7)
    e(f"  s_lshl_b32 s34, s31, 3\n  v_mov_b32 v7, s34\n  s_mov_b64 exec, 1\n  ds_write_b64 v7, v[10:11] offset:{L_ML}\n  s_mov_b64 exec, -1")
    signal_add(F_ML)
    for k in range(8):
        e(f"  v_cvt_pk_bf16_f32 v{36+k}, v{36+k}, v{36+k}")
        ands(48 + 4 * k, 36 + k)
    stamp(5)
    for t in range(8):
        e(f"  s_waitcnt vmcnt({7 - t})")
        e(f"  v_mfma_f32_16x16x32_bf16 v[20:23], v[{48+4*t}:{51+4*t}], v[{80+4*t}:{83+4*t}], {'0' if t == 0 else 'v[20:23]'}")
    e(f"  s_lshl_b32 s34, s31, 9\n  v_lshl_add_u32 v7, v2, 5, v4\n  v_add_u32 v7, s34, v7\n  s_mov_b32 exec_hi, 0\n  s_nop 3")
    e(f"  ds_write_b128 v7, v[20:23] offset:{L_OW}")
    signal_add(F_O)
    stamp(6)
    write_stamps(8)
    e("  s_endpgm")

    e("L_W:")
    e("  s_sub_u32 s31, s26, 6")
    srd(40, 18, SIZES["w2"]); srd(44, 12, SIZES["wo"])
    e("  v_cmp_gt_u32 vcc, 10, v2\n  v_mov_b32 v4, 0x7f000000\n  s_nop 0\n  v_cndmask_b32 v4, v4, v16, vcc")
    e("  v_mul_u32_u24 v5, 5120, v3\n  v_add_u32 v5, v5, v4\n  v_mul_u32_u24 v6, 10240, v3\n  v_add_u32 v6, v6, v4")
    e("  s_mul_i32 s34, s28, 160")
    e("  s_lshl_b32 s32, s27, 2\n  s_add_u32 s32, s32, s31\n  s_mul_i32 s33, s32, 40960\n  s_mul_i32 s32, s32, 20480\n  s_add_u32 s32, s32, s34\n  s_add_u32 s33, s33, s34\n  s_add_u32 s35, s33, 5120")
    e("  s_cmp_ge_u32 s27, 27\n  s_cselect_b32 s32, 0x7f000000, s32")
    e("  s_barrier")
    spin_lds(F_KV, 4)
    stamp(1)
    for t in range(4): e(f"  buffer_load_dwordx4 v[{48+4*t}:{51+4*t}], v5, s[40:43], s32 offen offset:{t * 1280} {ldflags}")
    for t in range(8): e(f"  buffer_load_dwordx4 v[{64+4*t}:{67+4*t}], v6, s[44:47], s{33 if t < 4 else 35} offen offset:{(t % 4) * 1280} {ldflags}")
    stamp(2)
    spin_lds(F_Q, 1)
    e(f"  s_lshl_b32 s34, s31, 6\n  v_lshl_add_u32 v7, v3, 4, s34\n  ds_read_b128 v[20:23], v7 offset:{L_HP}\n  s_waitcnt lgkmcnt(0)")
    for t in range(4):
        a = 40 if t % 2 == 0 else 44
        ands(a, 20 + t)
        e(f"  s_waitcnt vmcnt({11 - t})\n  s_nop 0")
        e(f"  v_mfma_f32_16x16x32_bf16 v[36:39], v[{a}:{a+3}], v[{48+4*t}:{51+4*t}], {'0' if t == 0 else 'v[36:39]'}")
    e(f"  s_lshl_b32 s34, s31, 7\n  v_lshl_add_u32 v7, v3, 5, s34")
    e(f"  s_lshl_b32 s34, s31, 9\n  v_lshlrev_b32 v10, 4, v3\n  v_lshl_add_u32 v10, v2, 5, v10\n  v_add_u32 v10, s34, v10")
    stamp(3)
    e("  s_barrier")
    e(f"  ds_read_b128 v[20:23], v7 offset:{L_OP}\n  ds_read_b128 v[24:27], v7 offset:{L_OP + 16}\n  s_waitcnt lgkmcnt(1)")
    stamp(4)
    for t in range(8):
        a = 40 if t % 2 == 0 else 44
        if t == 4: e("  s_waitcnt lgkmcnt(0)")
        ands(a, 20 + t)
        e(f"  s_waitcnt vmcnt({7 - t})\n  s_nop 0")
        e(f"  v_mfma_f32_16x16x32_bf16 v[36:39], v[{a}:{a+3}], v[{64+4*t}:{67+4*t}], v[36:39]")
    e("  s_mov_b32 exec_hi, 0\n  s_nop 6")
    e(f"  ds_write_b128 v10, v[36:39] offset:{L_YW}\n  s_waitcnt lgkmcnt(0)\n  s_barrier")
    stamp(5)
    write_stamps(8)
    e("L_end:")
    e(footer(128))
    open(fname, "w").write("\n".join(o))

if __name__ == "__main__":
    gen("v1_nt.s", ldflags="nt")
    gen("v1.s", ldflags="")
    gen("v1_nt_st.s", ldflags="nt", stamps=True)
    gen("v1_st.s", ldflags="", stamps=True)
    gen("v1_pad30.s", ldflags="nt", pad=3000)
    gen("v1_pad40.s", ldflags="nt", pad=4000)
```

```python
import sys
from common import *

EPOCH_OFF = 0
X1Q = 0x1000
X1H = X1Q + 256 * 1024
X2O = X1H + 256 * 512
X2ML = X2O + 256 * 1024
X3 = X2ML + 4096
F_KV, F_Q, F_ML, F_O = 0, 4, 8, 12
L_Q = 0x100
L_HP = 0x200
L_OP = 0x300
L_ML = 0x500
L_OW = 0x600
L_YW = 0xE00
L_XP = 0x1600
LDS_BYTES = 0x1A00
LOG2E = 0x3FB8AA3B
SCALE = 0x3DB504F3
SPIN_CAP = 1 << 18

def gen(fname, ldflags="nt", stamps=False, lds=None, bar0=True, pad=0, ictest=False):
    o = []
    def e(s): o.append(s)
    nst = [0]
    def stamp(k):
        if stamps: e(f"  s_memrealtime s[{80 + 2 * k}:{81 + 2 * k}]")
    def write_stamps(n):
        if not stamps: return
        e("  s_waitcnt lgkmcnt(0)")
        e(f"  s_mul_i32 s70, s2, 10\n  s_add_u32 s70, s70, s26\n  s_lshl_b32 s70, s70, 6\n  s_add_u32 s70, s70, {STAMP_OFF}")
        e("  s_mov_b64 exec, 1\n  v_mov_b32 v8, 0")
        for k in range(0, 8, 2):
            e(f"  v_mov_b32 v4, s{80+2*k}\n  v_mov_b32 v5, s{81+2*k}\n  v_mov_b32 v6, s{82+2*k}\n  v_mov_b32 v7, s{83+2*k}")
            e(f"  buffer_store_dwordx4 v[4:7], v8, s[36:39], s70 offen offset:{8*k}\n  s_nop 1")
    def srd(d, src, size):
        e(f"  s_mov_b32 s{d}, s{src}\n  s_mov_b32 s{d+1}, s{src+1}\n  s_mov_b32 s{d+2}, {size}\n  s_mov_b32 s{d+3}, 0x20000")
    lab = [0]
    def spin_lds(flag, n):
        lab[0] += 1; L = f"L_spin{lab[0]}"
        e(f"  s_mov_b32 s71, {SPIN_CAP}\n  v_mov_b32 v9, 0")
        e(f"{L}:\n  ds_read_b32 v8, v9 offset:{flag}\n  s_sub_u32 s71, s71, 1\n  s_cbranch_scc1 {L}_x\n  s_waitcnt lgkmcnt(0)\n  v_readfirstlane_b32 s72, v8\n  s_cmp_ge_u32 s72, {n}\n  s_cbranch_scc0 {L}\n{L}_x:\n  s_waitcnt lgkmcnt(0)")
    def signal_add(flag):
        e(f"  s_mov_b64 exec, 1\n  v_mov_b32 v8, 1\n  v_mov_b32 v9, 0\n  ds_add_u32 v9, v8 offset:{flag}\n  s_mov_b64 exec, -1")
    def allred_rows(op, v, t):
        e(f"  v_mov_b32 v{t}, v{v}\n  s_nop 1\n  v_permlane16_swap_b32 v{v}, v{t}\n  {op} v{v}, v{v}, v{t}\n  v_mov_b32 v{t}, v{v}\n  s_nop 1\n  v_permlane32_swap_b32 v{v}, v{t}\n  {op} v{v}, v{v}, v{t}")
    def allred_inrow(op, v, rors):
        for r in rors:
            e(f"  s_nop 1\n  {op}_dpp v{v}, v{v}, v{v} row_ror:{r} row_mask:0xf bank_mask:0xf")
    def bf16r(d, s):
        e(f"  v_cvt_pk_bf16_f32 v{d}, v{s}, v{s}\n  v_and_b32 v{d}, 0xffff0000, v{d}")
    def ands(a, pp):
        for r in range(4): e(f"  v_and_b32 v{a+r}, v{pp}, v{12+r}")

    e(header(256, 640, lds if lds else LDS_BYTES))
    e("  s_cmp_ge_u32 s2, 256\n  s_cbranch_scc1 L_end")
    if stamps:
        for k in range(8): e(f"  s_mov_b64 s[{80+2*k}:{81+2*k}], 0")
    stamp(0)
    if pad: e("  s_memrealtime s[76:77]")
    e("  s_load_dwordx16 s[4:19], s[0:1], 0\n  s_load_dwordx4 s[20:23], s[0:1], 64\n  s_load_dwordx2 s[24:25], s[0:1], 80")
    e("  v_lshrrev_b32 v1, 6, v0\n  v_and_b32 v0, 63, v0\n  v_and_b32 v2, 15, v0\n  v_readfirstlane_b32 s26, v1\n  v_lshrrev_b32 v3, 4, v0")
    e("  s_and_b32 s27, s2, 7\n  s_lshr_b32 s28, s2, 3\n  s_lshr_b32 s29, s28, 3\n  s_lshl_b32 s27, s27, 2\n  s_add_u32 s27, s27, s29\n  s_and_b32 s28, s28, 7")
    e("  s_lshl_b32 s29, s27, 3\n  s_add_u32 s29, s29, s28")
    e("  v_and_b32 v4, 1, v0\n  v_lshlrev_b32 v4, 4, v4\n  v_mov_b32 v5, 0xffff\n  v_lshlrev_b32 v5, v4, v5")
    e("  v_bfe_u32 v4, v0, 1, 2")
    for r in range(4):
        e(f"  v_cmp_eq_u32 vcc, {r}, v4\n  s_nop 1\n  v_cndmask_b32 v{12+r}, 0, v5, vcc")
    e("  v_lshlrev_b32 v16, 4, v2")
    e("  v_lshlrev_b32 v17, 4, v0")
    e("  s_waitcnt lgkmcnt(0)")
    srd(36, 24, WS)
    e("  s_cmp_ge_u32 s26, 6\n  s_cbranch_scc1 L_W\n  s_cmp_ge_u32 s26, 2\n  s_cbranch_scc1 L_KV")

    e(f"  s_load_dword s30, s[24:25], {EPOCH_OFF}")
    srd(40, 4, 1280)
    e("  buffer_load_dwordx4 v[20:23], v17, s[40:43], 0 offen\n  buffer_load_dwordx4 v[24:27], v17, s[40:43], 0 offen offset:1024")
    e("  s_mul_i32 s31, s28, 160\n  v_lshlrev_b32 v4, 2, v0\n  buffer_load_dword v28, v4, s[40:43], s31 offen")
    e("  s_cmp_eq_u32 s26, 1\n  s_cbranch_scc1 L_B0")
    srd(44, 10, SIZES["wq"])
    e("  v_mul_u32_u24 v5, 163840, v3\n  v_add_u32 v5, v5, v16")
    e("  s_mul_i32 s32, s28, 655360\n  s_lshl_b32 s33, s27, 8\n  s_add_u32 s32, s32, s33\n  s_movk_i32 s34, 0x2000")
    for t in range(20):
        e(f"  buffer_load_dwordx4 v[{48+4*t}:{51+4*t}], v5, s[44:47], s32 offen {ldflags}")
        if t < 19: e("  s_add_u32 s32, s32, s34")
    e("  s_lshl_b32 s33, s27, 3\n  s_add_u32 s33, s33, s31\n  v_and_b32 v4, 1, v0\n  v_lshlrev_b32 v4, 2, v4\n  buffer_load_dword v1, v4, s[40:43], s33 offen")
    e("  v_mov_b32 v4, 0\n  v_mov_b32 v6, 0\n  v_mov_b32 v7, 0\n  v_mov_b32 v8, 0\n  v_mov_b32 v9, 0\n  ds_write_b128 v4, v[6:9]\n  s_waitcnt lgkmcnt(0)")
    e(f"  s_movk_i32 s35, {L_XP}\n  s_branch L_AB1")
    e("L_B0:")
    srd(44, 16, SIZES["w1"])
    e("  v_lshrrev_b32 v4, 3, v2\n  v_lshl_add_u32 v4, v3, 1, v4\n  v_mul_u32_u24 v5, 34560, v4\n  v_and_b32 v6, 7, v2\n  v_lshl_add_u32 v5, v6, 4, v5")
    e("  s_mul_i32 s32, s28, 276480\n  s_lshl_b32 s33, s27, 7\n  s_add_u32 s32, s32, s33\n  s_cmp_ge_u32 s27, 27\n  s_cselect_b32 s32, 0x7f000000, s32\n  s_movk_i32 s34, 3456")
    for t in range(10):
        e(f"  buffer_load_dwordx4 v[{48+4*t}:{51+4*t}], v5, s[44:47], s32 offen {ldflags}")
        if t < 9: e("  s_add_u32 s32, s32, s34")
    e(f"  s_movk_i32 s35, {L_XP + 512}")
    e("L_AB1:")
    e("  s_barrier")
    stamp(1)
    e("  s_waitcnt lgkmcnt(0)")
    e("  s_mul_i32 s60, s30, 0x9E3779B1\n  s_add_u32 s60, s60, 0x7F4A7C15\n  s_xor_b32 s61, s30, 0x5bd1e995\n  s_mul_i32 s61, s61, 0x85EBCA6B\n  s_add_u32 s61, s61, 0x1B873593")
    e("  s_cmp_eq_u32 s26, 1\n  s_cbranch_scc1 L_Bw\n  s_waitcnt vmcnt(21)\n  s_branch L_ABw\nL_Bw:\n  s_waitcnt vmcnt(10)\nL_ABw:")
    stamp(2)
    for k in range(8):
        e(f"  v_lshlrev_b32 v{30+2*k}, 16, v{20+k}\n  v_and_b32 v{31+2*k}, 0xffff0000, v{20+k}")
    e("  v_add_f32 v4, v30, v31")
    for k in range(2, 16): e(f"  v_add_f32 v4, v4, v{30+k}")
    allred_inrow("v_add_f32", 4, [8, 4, 2, 1]); allred_rows("v_add_f32", 4, 5)
    e("  v_mul_f32 v4, 0x3ACCCCCD, v4")
    for k in range(16): e(f"  v_sub_f32 v{30+k}, v{30+k}, v4")
    e("  v_mul_f32 v6, v38, v38")
    for k in range(9, 16): e(f"  v_fmac_f32 v6, v{30+k}, v{30+k}")
    e("  v_cmp_gt_u32 vcc, 16, v0\n  s_nop 1\n  v_cndmask_b32 v6, 0, v6, vcc")
    for k in range(8): e(f"  v_fmac_f32 v6, v{30+k}, v{30+k}")
    allred_inrow("v_add_f32", 6, [8, 4, 2, 1]); allred_rows("v_add_f32", 6, 5)
    e("  v_mul_f32 v6, 0x3ACCCCCD, v6")
    bf16r(6, 6)
    e("  v_add_f32 v6, 0x3727C5AC, v6")
    bf16r(6, 6)
    e("  v_sqrt_f32 v7, v6\n  s_nop 0\n  v_rcp_f32 v5, v7\n  v_fma_f32 v10, -v7, v7, v6\n  v_mul_f32 v5, 0.5, v5\n  v_fmac_f32 v7, v10, v5")
    bf16r(7, 7)
    bf16r(4, 4)
    e("  v_rcp_f32 v5, v7")
    e("  v_lshlrev_b32 v30, 16, v28\n  v_and_b32 v31, 0xffff0000, v28\n  v_sub_f32 v30, v30, v4\n  v_sub_f32 v31, v31, v4")
    e("  v_cvt_pk_bf16_f32 v30, v30, v31\n  v_and_b32 v31, 0xffff0000, v30\n  v_lshlrev_b32 v30, 16, v30")
    for k in (30, 31):
        e(f"  v_mul_f32 v32, v{k}, v5\n  v_fma_f32 v33, -v32, v7, v{k}\n  v_fma_f32 v{k}, v33, v5, v32\n  v_cvt_pk_bf16_f32 v{k}, v{k}, v{k}")
    e("  v_lshl_add_u32 v4, v0, 3, s35\n  v_cmp_gt_u32 vcc, 40, v0\n  s_and_saveexec_b64 s[62:63], vcc\n  ds_write_b64 v4, v[30:31]\n  s_mov_b64 exec, s[62:63]")
    e("  s_mov_b32 s64, 0\n  s_mov_b32 s65, -1")
    e("  v_and_b32 v4, 1, v3\n  v_lshlrev_b32 v4, 5, v4\n  v_lshrrev_b32 v5, 1, v3\n  v_lshl_add_u32 v4, v5, 4, v4")
    e("  s_cmp_eq_u32 s26, 1\n  s_cbranch_scc1 L_B1")

    e("  v_lshl_add_u32 v18, v2, 6, v4")
    e("  v_mul_u32_u24 v5, 80, v3\n  v_add_u32 v5, s35, v5")
    for k in range(5): e(f"  ds_read_b128 v[{20+4*k}:{23+4*k}], v5 offset:{16*k}")
    e("  s_waitcnt lgkmcnt(0)")
    stamp(3)
    for t in range(20):
        a = 40 if t % 2 == 0 else 44
        ands(a, 20 + t)
        e(f"  s_waitcnt vmcnt({20 - t})\n  s_nop 0")
        e(f"  v_mfma_f32_16x16x32_bf16 v[4:7], v[{a}:{a+3}], v[{48+4*t}:{51+4*t}], {'0' if t == 0 else 'v[4:7]'}")
    e("  v_mov_b32 v9, s60\n  v_mov_b32 v11, s61\n  s_lshl_b32 s32, s29, 10\n  s_add_u32 s32, s32, %d\n  s_nop 4" % X1Q)
    e("  v_cndmask_b32 v8, v4, v6, s[64:65]\n  v_cndmask_b32 v10, v5, v7, s[64:65]")
    e("  buffer_store_dwordx4 v[8:11], v18, s[36:39], s32 offen sc1")
    stamp(4)
    e(f"  s_lshl_b32 s32, s27, 13\n  s_add_u32 s32, s32, {X1Q}\n  s_add_u32 s33, s32, 4096\n  s_lshl_b32 s34, s27, 12\n  s_add_u32 s34, s34, {X1H}")
    e(f"  s_mov_b32 s71, {SPIN_CAP}")
    e("L_g1:")
    for k in range(8): e(f"  buffer_load_dwordx4 v[{48+4*k}:{51+4*k}], v17, s[36:39], s{32 + k // 4} offen offset:{(k % 4) * 1024} sc1")
    for k in range(4): e(f"  buffer_load_dwordx4 v[{80+4*k}:{83+4*k}], v17, s[36:39], s34 offen offset:{k * 1024} sc1")
    e("  s_sub_u32 s71, s71, 1\n  s_cbranch_scc1 L_g1x\n  v_mov_b32 v4, 0")
    for k in range(12):
        e(f"  s_waitcnt vmcnt({11 - k})\n  v_sad_u32 v4, v{49+4*k}, s60, v4 clamp\n  v_sad_u32 v4, v{51+4*k}, s61, v4 clamp")
    e("  v_cmp_ne_u32 vcc, 0, v4\n  s_cbranch_vccnz L_g1\nL_g1x:\n  s_waitcnt vmcnt(0)")
    for k in range(1, 8): e(f"  v_add_f32 v48, v48, v{48+4*k}\n  v_add_f32 v50, v50, v{50+4*k}")
    for k in range(1, 4): e(f"  v_add_f32 v80, v80, v{80+4*k}\n  v_add_f32 v82, v82, v{82+4*k}")
    e(f"  v_cvt_pk_bf16_f32 v48, v48, v50\n  v_lshlrev_b32 v4, 2, v0\n  ds_write_b32 v4, v48 offset:{L_Q}")
    e("  v_mov_b32 v81, v80\n  v_mov_b32 v83, v82\n  s_nop 1\n  v_permlane32_swap_b32 v80, v81\n  v_permlane32_swap_b32 v82, v83\n  v_add_f32 v80, v80, v81\n  v_add_f32 v82, v82, v83")
    for k in (80, 82):
        bf16r(k, k)
        e(f"  v_mul_f32 v84, {hex(LOG2E | 0x80000000)}, v{k}\n  v_exp_f32 v84, v84\n  s_nop 0\n  v_add_f32 v84, 1.0, v84\n  v_rcp_f32 v85, v84\n  s_nop 0\n  v_mul_f32 v{k}, v{k}, v85\n  v_cvt_pk_bf16_f32 v{k}, v{k}, v{k}")
    e(f"  v_mov_b32 v81, v82\n  v_lshlrev_b32 v19, 3, v0\n  s_mov_b32 exec_hi, 0\n  ds_write_b64 v19, v[80:81] offset:{L_HP}\n  s_mov_b64 exec, -1")
    signal_add(F_Q)
    stamp(5)
    spin_lds(F_ML, 4)
    e(f"  v_mov_b32 v4, 0\n  ds_read_b128 v[20:23], v4 offset:{L_ML}\n  ds_read_b128 v[24:27], v4 offset:{L_ML+16}\n  s_waitcnt lgkmcnt(0)")
    e("  v_max_f32 v28, v20, v22\n  v_max3_f32 v28, v28, v24, v26")
    for k in range(4):
        e(f"  v_sub_f32 v{20+2*k}, v{20+2*k}, v28\n  v_mul_f32 v{20+2*k}, {hex(LOG2E)}, v{20+2*k}\n  v_exp_f32 v{20+2*k}, v{20+2*k}")
    e("  s_nop 0\n  v_mul_f32 v10, v20, v21\n  v_fmac_f32 v10, v22, v23\n  v_fmac_f32 v10, v24, v25\n  v_fmac_f32 v10, v26, v27\n  v_mov_b32 v8, v28\n  v_mov_b32 v9, s60")
    e(f"  s_lshl_b32 s32, s29, 4\n  s_add_u32 s32, s32, {X2ML}\n  v_mov_b32 v30, 0\n  s_mov_b64 exec, 1\n  buffer_store_dwordx4 v[8:11], v30, s[36:39], s32 offen sc1\n  s_mov_b64 exec, -1")
    spin_lds(F_O, 4)
    for k in range(4): e(f"  ds_read_b64 v[{32+2*k}:{33+2*k}], v19 offset:{L_OW + 512*k}")
    e("  v_mov_b32 v9, s60\n  s_waitcnt lgkmcnt(3)\n  v_mul_f32 v8, v20, v32\n  v_mul_f32 v10, v20, v33")
    for k in range(1, 4): e(f"  s_waitcnt lgkmcnt({3-k})\n  v_fmac_f32 v8, v{20+2*k}, v{32+2*k}\n  v_fmac_f32 v10, v{20+2*k}, v{33+2*k}")
    e(f"  s_lshl_b32 s32, s29, 10\n  s_add_u32 s32, s32, {X2O}\n  buffer_store_dwordx4 v[8:11], v17, s[36:39], s32 offen sc1")
    stamp(6)
    e(f"  s_lshl_b32 s32, s27, 13\n  s_add_u32 s32, s32, {X2O}\n  s_add_u32 s33, s32, 4096\n  s_lshl_b32 s34, s27, 7\n  s_add_u32 s34, s34, {X2ML}")
    e(f"  v_and_b32 v5, 7, v0\n  v_lshlrev_b32 v5, 4, v5\n  s_mov_b32 s71, {SPIN_CAP}")
    e("L_g2:")
    e("  buffer_load_dwordx4 v[80:83], v5, s[36:39], s34 offen sc1")
    for k in range(8): e(f"  buffer_load_dwordx4 v[{48+4*k}:{51+4*k}], v17, s[36:39], s{32 + k // 4} offen offset:{(k % 4) * 1024} sc1")
    e("  s_sub_u32 s71, s71, 1\n  s_cbranch_scc1 L_g2x\n  v_mov_b32 v4, 0")
    e("  s_waitcnt vmcnt(8)\n  v_sad_u32 v4, v81, s60, v4 clamp\n  v_sad_u32 v4, v83, s61, v4 clamp")
    for k in range(8):
        e(f"  s_waitcnt vmcnt({7 - k})\n  v_sad_u32 v4, v{49+4*k}, s60, v4 clamp\n  v_sad_u32 v4, v{51+4*k}, s61, v4 clamp")
    e("  v_cmp_ne_u32 vcc, 0, v4\n  s_cbranch_vccnz L_g2\nL_g2x:\n  s_waitcnt vmcnt(0)")
    e("  v_mov_b32 v84, v80")
    allred_inrow("v_max_f32", 84, [4, 2, 1])
    e(f"  v_sub_f32 v80, v80, v84\n  v_mul_f32 v80, {hex(LOG2E)}, v80\n  v_exp_f32 v80, v80\n  s_nop 0\n  v_mul_f32 v82, v80, v82")
    allred_inrow("v_add_f32", 82, [4, 2, 1])
    e("  v_rcp_f32 v82, v82\n  s_nop 0\n  v_mul_f32 v80, v80, v82\n  s_nop 0")
    for k in range(8): e(f"  v_readlane_b32 s{48+k}, v80, {k}")
    e("  s_nop 1\n  v_mul_f32 v8, s48, v48\n  v_mul_f32 v10, s48, v50")
    for k in range(1, 8): e(f"  v_fmac_f32 v8, s{48+k}, v{48+4*k}\n  v_fmac_f32 v10, s{48+k}, v{50+4*k}")
    e(f"  v_cvt_pk_bf16_f32 v6, v8, v8\n  v_cvt_pk_bf16_f32 v7, v10, v10\n  ds_write_b64 v19, v[6:7] offset:{L_OP}\n  s_waitcnt lgkmcnt(0)\n  s_barrier")
    e("  v_lshrrev_b32 v4, 1, v0\n  v_lshlrev_b32 v4, 10, v4\n  v_and_b32 v5, 1, v0\n  v_lshl_add_u32 v4, v5, 4, v4")
    e(f"  s_mul_i32 s32, s28, 20480\n  s_lshl_b32 s33, s27, 5\n  s_add_u32 s33, s33, s32\n  s_add_u32 s33, s33, {X3}")
    e("  s_barrier")
    for k in range(4): e(f"  ds_read_b64 v[{32+2*k}:{33+2*k}], v19 offset:{L_YW + 512*k}")
    e("  s_waitcnt lgkmcnt(2)\n  v_add_f32 v8, v32, v34\n  v_add_f32 v10, v33, v35\n  s_waitcnt lgkmcnt(0)\n  v_add_f32 v8, v8, v36\n  v_add_f32 v10, v10, v37\n  v_add_f32 v8, v8, v38\n  v_add_f32 v10, v10, v39")
    e("  v_cmp_gt_u32 vcc, 40, v0\n  s_and_saveexec_b64 s[62:63], vcc\n  buffer_store_dwordx4 v[8:11], v4, s[36:39], s33 offen sc1\n  s_mov_b64 exec, s[62:63]")
    e("  s_cmp_ge_u32 s27, 20\n  s_cbranch_scc1 L_Aend")
    e(f"  s_lshl_b32 s33, s27, 10\n  s_add_u32 s33, s33, s32\n  s_add_u32 s33, s33, {X3}\n  s_mov_b32 s71, {SPIN_CAP}")
    srd(40, 20, 1280)
    e("L_g3:")
    e("  buffer_load_dwordx4 v[48:51], v17, s[36:39], s33 offen sc1")
    e("  s_sub_u32 s71, s71, 1\n  s_cbranch_scc1 L_g3x\n  s_waitcnt vmcnt(0)\n  v_xor_b32 v4, s60, v49\n  v_xor_b32 v5, s61, v51\n  v_or_b32 v4, v4, v5")
    e("  v_cmp_ne_u32 vcc, 0, v4\n  s_cbranch_vccnz L_g3\nL_g3x:\n  s_waitcnt vmcnt(0)")
    for r in (2, 4, 8):
        e(f"  v_add_f32_dpp v48, v48, v48 row_ror:{r} row_mask:0xf bank_mask:0xf\n  v_add_f32_dpp v50, v50, v50 row_ror:{r} row_mask:0xf bank_mask:0xf\n  s_nop 0")
    e("  v_mov_b32 v49, v48\n  v_mov_b32 v51, v50\n  s_nop 0\n  v_permlane16_swap_b32 v48, v49\n  v_permlane16_swap_b32 v50, v51\n  v_add_f32 v48, v48, v49\n  v_add_f32 v50, v50, v51")
    e("  v_mov_b32 v49, v48\n  v_mov_b32 v51, v50\n  s_nop 0\n  v_permlane32_swap_b32 v48, v49\n  v_permlane32_swap_b32 v50, v51\n  v_add_f32 v48, v48, v49\n  v_add_f32 v50, v50, v51")
    e("  v_lshlrev_b32 v4, 16, v1\n  v_and_b32 v5, 0xffff0000, v1\n  v_add_f32 v48, v48, v4\n  v_add_f32 v50, v50, v5\n  v_cvt_pk_bf16_f32 v48, v48, v50")
    e("  s_lshl_b32 s33, s27, 3\n  s_add_u32 s33, s33, s31\n  v_lshlrev_b32 v4, 2, v0\n  s_mov_b64 exec, 3\n  buffer_store_dword v48, v4, s[40:43], s33 offen")
    e(f"  s_cmp_lg_u32 s29, 0\n  s_cbranch_scc1 L_Aend\n  s_add_u32 s30, s30, 1\n  v_mov_b32 v5, s30\n  s_mov_b64 exec, 1\n  buffer_store_dword v5, v4, s[36:39], 0 offen offset:{EPOCH_OFF} sc1")
    e("L_Aend:")
    if ictest:
        e("  s_memrealtime s[72:73]\n  s_waitcnt lgkmcnt(0)\n  s_branch L_far\n  .fill 2048, 4, 0xBF800000\nL_far:")
        for i in range(126): e(f"  v_mov_b32 v{4 + i % 8}, v0")
        e("  s_memrealtime s[74:75]\n  s_waitcnt lgkmcnt(0)\n  s_sub_u32 s74, s74, s72\n  s_mul_i32 s74, s74, 20\n  s_add_u32 s76, s76, s74")
    if pad:
        e(f"L_pad:\n  s_memrealtime s[78:79]\n  s_waitcnt lgkmcnt(0)\n  s_sub_u32 s78, s78, s76\n  s_cmp_lt_i32 s78, {pad}\n  s_cbranch_scc1 L_pad")
    stamp(7)
    write_stamps(8)
    e("  s_endpgm")

    e("L_B1:")
    e("  v_and_b32 v5, 7, v2\n  v_lshl_add_u32 v18, v5, 6, v4")
    e("  v_lshrrev_b32 v5, 3, v2\n  v_lshl_add_u32 v5, v3, 1, v5\n  v_mul_u32_u24 v5, 40, v5\n  v_add_u32 v5, s35, v5")
    for k in range(5): e(f"  ds_read_b64 v[{20+2*k}:{21+2*k}], v5 offset:{8*k}")
    e("  s_waitcnt lgkmcnt(0)")
    for t in range(10):
        a = 40 if t % 2 == 0 else 44
        ands(a, 20 + t)
        e(f"  s_waitcnt vmcnt({9 - t})\n  s_nop 0")
        e(f"  v_mfma_f32_16x16x32_bf16 v[4:7], v[{a}:{a+3}], v[{48+4*t}:{51+4*t}], {'0' if t == 0 else 'v[4:7]'}")
    e("  v_mov_b32 v9, s60\n  v_mov_b32 v11, s61\n  s_lshl_b32 s32, s29, 9\n  s_add_u32 s32, s32, %d\n  s_nop 4" % X1H)
    for r in range(4): e(f"  v_mov_b32_dpp v{20+r}, v{4+r} row_ror:8 row_mask:0xf bank_mask:0xf")
    for r in range(4): e(f"  v_mov_b32 v{24+r}, v{20+r}")
    e("  s_nop 1")
    for r in range(4): e(f"  v_permlane32_swap_b32 v{20+r}, v{24+r}")
    for r in range(4): e(f"  v_cndmask_b32 v{20+r}, v{24+r}, v{20+r}, s[64:65]")
    for r in range(4): e(f"  v_add_f32 v{4+r}, v{4+r}, v{20+r}")
    e("  v_cndmask_b32 v8, v4, v6, s[64:65]\n  v_cndmask_b32 v10, v5, v7, s[64:65]")
    e("  s_mov_b32 exec_lo, 0x00ff00ff\n  s_mov_b32 exec_hi, 0xff00ff00")
    e("  buffer_store_dwordx4 v[8:11], v18, s[36:39], s32 offen sc1")
    stamp(4)
    write_stamps(8)
    e("  s_endpgm")

    e("L_KV:")
    e("  s_sub_u32 s31, s26, 2")
    srd(40, 6, SIZES["k"]); srd(44, 8, SIZES["v"])
    e("  s_lshl_b32 s32, s27, 20\n  s_lshl_b32 s33, s28, 15\n  s_add_u32 s32, s32, s33\n  s_lshl_b32 s33, s31, 13\n  s_add_u32 s32, s32, s33\n  s_add_u32 s32, s32, 786432\n  s_add_u32 s33, s32, 4096")
    e("  v_lshlrev_b32 v4, 4, v3\n  v_lshl_add_u32 v5, v2, 8, v4\n  v_lshl_add_u32 v6, v3, 10, v16")
    e("  s_barrier")
    stamp(1)
    for t in range(8): e(f"  buffer_load_dwordx4 v[{48+4*t}:{51+4*t}], v5, s[40:43], s{32 + t // 4} offen offset:{(t % 4) * 64} {ldflags}")
    for t in range(8): e(f"  buffer_load_dwordx4 v[{80+4*t}:{83+4*t}], v6, s[44:47], s{32 + t // 4} offen offset:{(t % 4) * 256} {ldflags}")
    signal_add(F_KV)
    stamp(2)
    spin_lds(F_Q, 1)
    for k in range(4): e(f"  ds_read_b128 v[{20+4*k}:{23+4*k}], v4 offset:{L_Q + 64*k}")
    e("  s_waitcnt lgkmcnt(0)")
    stamp(3)
    for t in range(8):
        d = 36 + 4 * (t // 4)
        e(f"  s_waitcnt vmcnt({15 - t})")
        e(f"  v_mfma_f32_16x16x32_bf16 v[{d}:{d+3}], v[{48+4*t}:{51+4*t}], v[{20+4*(t%4)}:{23+4*(t%4)}], {'0' if t % 4 == 0 else f'v[{d}:{d+3}]'}")
    e(f"  s_mov_b32 s34, {hex(SCALE)}\n  s_mov_b32 s35, {hex(LOG2E)}\n  s_nop 6")
    stamp(4)
    for k in range(0, 8, 2):
        a, b = 36 + k, 37 + k
        e(f"  v_cvt_pk_bf16_f32 v{a}, v{a}, v{b}\n  v_and_b32 v{b}, 0xffff0000, v{a}\n  v_lshlrev_b32 v{a}, 16, v{a}\n  v_mul_f32 v{a}, s34, v{a}\n  v_mul_f32 v{b}, s34, v{b}")
        e(f"  v_cvt_pk_bf16_f32 v{a}, v{a}, v{b}\n  v_and_b32 v{b}, 0xffff0000, v{a}\n  v_lshlrev_b32 v{a}, 16, v{a}")
    e("  v_max3_f32 v10, v36, v37, v38\n  v_max3_f32 v10, v10, v39, v40\n  v_max3_f32 v10, v10, v41, v42\n  v_max_f32 v10, v10, v43")
    allred_rows("v_max_f32", 10, 7)
    for k in range(8): e(f"  v_sub_f32 v{36+k}, v{36+k}, v10\n  v_mul_f32 v{36+k}, s35, v{36+k}\n  v_exp_f32 v{36+k}, v{36+k}")
    e("  s_nop 0\n  v_add_f32 v11, v36, v37")
    for k in range(2, 8): e(f"  v_add_f32 v11, v11, v{36+k}")
    allred_rows("v_add_f32", 11, 7)
    e(f"  s_lshl_b32 s34, s31, 3\n  v_mov_b32 v7, s34\n  s_mov_b64 exec, 1\n  ds_write_b64 v7, v[10:11] offset:{L_ML}\n  s_mov_b64 exec, -1")
    signal_add(F_ML)
    for k in range(8):
        e(f"  v_cvt_pk_bf16_f32 v{36+k}, v{36+k}, v{36+k}")
        ands(48 + 4 * k, 36 + k)
    stamp(5)
    for t in range(8):
        e(f"  s_waitcnt vmcnt({7 - t})")
        e(f"  v_mfma_f32_16x16x32_bf16 v[20:23], v[{48+4*t}:{51+4*t}], v[{80+4*t}:{83+4*t}], {'0' if t == 0 else 'v[20:23]'}")
    e(f"  s_lshl_b32 s34, s31, 9\n  v_lshl_add_u32 v7, v2, 5, v4\n  v_add_u32 v7, s34, v7\n  s_mov_b32 exec_hi, 0\n  s_nop 3")
    e(f"  ds_write_b128 v7, v[20:23] offset:{L_OW}")
    signal_add(F_O)
    stamp(6)
    write_stamps(8)
    e("  s_endpgm")

    e("L_W:")
    e("  s_sub_u32 s31, s26, 6")
    srd(40, 18, SIZES["w2"]); srd(44, 12, SIZES["wo"])
    e("  v_cmp_gt_u32 vcc, 10, v2\n  v_mov_b32 v4, 0x7f000000\n  s_nop 0\n  v_cndmask_b32 v4, v4, v16, vcc")
    e("  v_mul_u32_u24 v5, 5120, v3\n  v_add_u32 v5, v5, v4\n  v_mul_u32_u24 v6, 10240, v3\n  v_add_u32 v6, v6, v4")
    e("  s_mul_i32 s34, s28, 160")
    e("  s_lshl_b32 s32, s27, 2\n  s_add_u32 s32, s32, s31\n  s_mul_i32 s33, s32, 40960\n  s_mul_i32 s32, s32, 20480\n  s_add_u32 s32, s32, s34\n  s_add_u32 s33, s33, s34\n  s_add_u32 s35, s33, 5120")
    e("  s_cmp_ge_u32 s27, 27\n  s_cselect_b32 s32, 0x7f000000, s32")
    e("  s_barrier")
    spin_lds(F_KV, 4)
    stamp(1)
    for t in range(4): e(f"  buffer_load_dwordx4 v[{48+4*t}:{51+4*t}], v5, s[40:43], s32 offen offset:{t * 1280} {ldflags}")
    for t in range(8): e(f"  buffer_load_dwordx4 v[{64+4*t}:{67+4*t}], v6, s[44:47], s{33 if t < 4 else 35} offen offset:{(t % 4) * 1280} {ldflags}")
    stamp(2)
    spin_lds(F_Q, 1)
    e(f"  s_lshl_b32 s34, s31, 6\n  v_lshl_add_u32 v7, v3, 4, s34\n  ds_read_b128 v[20:23], v7 offset:{L_HP}\n  s_waitcnt lgkmcnt(0)")
    for t in range(4):
        a = 40 if t % 2 == 0 else 44
        ands(a, 20 + t)
        e(f"  s_waitcnt vmcnt({11 - t})\n  s_nop 0")
        e(f"  v_mfma_f32_16x16x32_bf16 v[36:39], v[{a}:{a+3}], v[{48+4*t}:{51+4*t}], {'0' if t == 0 else 'v[36:39]'}")
    e(f"  s_lshl_b32 s34, s31, 7\n  v_lshl_add_u32 v7, v3, 5, s34")
    e(f"  s_lshl_b32 s34, s31, 9\n  v_lshlrev_b32 v10, 4, v3\n  v_lshl_add_u32 v10, v2, 5, v10\n  v_add_u32 v10, s34, v10")
    stamp(3)
    e("  s_barrier")
    e(f"  ds_read_b128 v[20:23], v7 offset:{L_OP}\n  ds_read_b128 v[24:27], v7 offset:{L_OP + 16}\n  s_waitcnt lgkmcnt(1)")
    stamp(4)
    for t in range(8):
        a = 40 if t % 2 == 0 else 44
        if t == 4: e("  s_waitcnt lgkmcnt(0)")
        ands(a, 20 + t)
        e(f"  s_waitcnt vmcnt({7 - t})\n  s_nop 0")
        e(f"  v_mfma_f32_16x16x32_bf16 v[36:39], v[{a}:{a+3}], v[{64+4*t}:{67+4*t}], v[36:39]")
    e("  s_mov_b32 exec_hi, 0\n  s_nop 6")
    e(f"  ds_write_b128 v10, v[36:39] offset:{L_YW}\n  s_waitcnt lgkmcnt(0)\n  s_barrier")
    stamp(5)
    write_stamps(8)
    e("L_end:")
    e(footer(128))
    open(fname, "w").write("\n".join(o))

if __name__ == "__main__":
    gen("v1_nt.s", ldflags="nt")
    gen("v1.s", ldflags="")
    gen("v1_nt_st.s", ldflags="nt", stamps=True)
    gen("v1_st.s", ldflags="", stamps=True)
    gen("v1_pad30.s", ldflags="nt", pad=3000)
    gen("v1_pad40.s", ldflags="nt", pad=4000)
    gen("v1_ic.s", ldflags="nt", pad=3000, ictest=True)
```

```python
import sys
from common import *

EPOCH_OFF = 0
X1H = 0x1000
X2O = X1H + 256 * 512
X2ML = X2O + 256 * 1024
X3 = X2ML + 256 * 128
F_LN, F_QP, F_ML, F_O, F_ISS, F_H = 0, 4, 8, 12, 16, 20
L_Q = 0x100
L_HP = 0x200
L_OP = 0x300
L_ML = 0x500
L_OW = 0x600
L_YW = 0xE00
L_XP = 0x1600
L_QW = 0x2000
LDS_BYTES = 0x2800
LOG2E = 0x3FB8AA3B
SCALE = 0x3DB504F3
SPIN_CAP = 1 << 18
NW = 9

class VM:
    def __init__(self, e): self.q = []; self.e = e
    def issue(self, tag): self.q.append(tag)
    def wait(self, tag):
        idx = max(i for i, t in enumerate(self.q) if t == tag)
        n = len(self.q) - 1 - idx
        assert n <= 63
        self.e(f"  s_waitcnt vmcnt({n})")

def gen(fname, kvflags="nt", wqflags="", wflags="nt", stamps=False, pad=0, vsched=(0,0,0,0,1,1,1,1,1,3), ring=3, cpf=True, issgate=4, npoll3=1):
    o = []
    def e(s): o.append(s)
    def stamp(k):
        if stamps: e(f"  s_memrealtime s[{80 + 2 * k}:{81 + 2 * k}]")
    def write_stamps():
        if not stamps: return
        e("  s_waitcnt lgkmcnt(0)")
        e(f"  s_mul_i32 s70, s2, {NW}\n  s_add_u32 s70, s70, s26\n  s_lshl_b32 s70, s70, 6\n  s_add_u32 s70, s70, {STAMP_OFF}")
        e("  s_mov_b64 exec, 1\n  v_mov_b32 v8, 0")
        for k in range(0, 8, 2):
            e(f"  v_mov_b32 v4, s{80+2*k}\n  v_mov_b32 v5, s{81+2*k}\n  v_mov_b32 v6, s{82+2*k}\n  v_mov_b32 v7, s{83+2*k}")
            e(f"  buffer_store_dwordx4 v[4:7], v8, s[36:39], s70 offen offset:{8*k}\n  s_nop 1")
    def srd(d, src, size):
        e(f"  s_mov_b32 s{d}, s{src}\n  s_mov_b32 s{d+1}, s{src+1}\n  s_mov_b32 s{d+2}, {size}\n  s_mov_b32 s{d+3}, 0x20000")
    lab = [0]
    def spin_lds(flag, n):
        lab[0] += 1; L = f"L_spin{lab[0]}"
        e(f"  s_mov_b32 s71, {SPIN_CAP}")
        e(f"{L}:\n  ds_read_b32 v8, v1 offset:{flag}\n  s_sub_u32 s71, s71, 1\n  s_cbranch_scc1 {L}_x\n  s_waitcnt lgkmcnt(0)\n  v_readfirstlane_b32 s72, v8\n  s_cmp_ge_u32 s72, {n}\n  s_cbranch_scc0 {L}\n{L}_x:")
    def signal_add(flag):
        e(f"  s_mov_b64 exec, 1\n  ds_add_u32 v1, v18 offset:{flag}\n  s_mov_b64 exec, -1")
    def allred_rows(op, v, t):
        e(f"  v_mov_b32 v{t}, v{v}\n  s_nop 1\n  v_permlane16_swap_b32 v{v}, v{t}\n  {op} v{v}, v{v}, v{t}\n  v_mov_b32 v{t}, v{v}\n  s_nop 1\n  v_permlane32_swap_b32 v{v}, v{t}\n  {op} v{v}, v{v}, v{t}")
    def allred_inrow(op, v, rors):
        for r in rors:
            e(f"  s_nop 1\n  {op}_dpp v{v}, v{v}, v{v} row_ror:{r} row_mask:0xf bank_mask:0xf")
    def bf16r(d, s):
        e(f"  v_cvt_pk_bf16_f32 v{d}, v{s}, v{s}\n  v_and_b32 v{d}, 0xffff0000, v{d}")
    def ands(a, pp):
        for r in range(4): e(f"  v_and_b32 v{a+r}, v{pp}, v{12+r}")

    e(header(256, 64 * NW, LDS_BYTES))
    e("  s_cmp_ge_u32 s2, 256\n  s_cbranch_scc1 L_end")
    e("  s_load_dwordx16 s[4:19], s[0:1], 0\n  s_load_dwordx4 s[20:23], s[0:1], 64\n  s_load_dwordx2 s[24:25], s[0:1], 80")
    if stamps:
        for k in range(8): e(f"  s_mov_b64 s[{80+2*k}:{81+2*k}], 0")
    stamp(0)
    if pad: e("  s_memrealtime s[76:77]")
    e("  v_lshrrev_b32 v4, 6, v0\n  v_and_b32 v0, 63, v0\n  v_mov_b32 v1, 0\n  v_readfirstlane_b32 s26, v4\n  v_and_b32 v2, 15, v0\n  v_lshrrev_b32 v3, 4, v0")
    e("  v_lshlrev_b32 v4, 2, v0\n  s_mov_b64 exec, 0xff\n  ds_write_b32 v4, v1\n  s_mov_b64 exec, -1")
    e("  s_and_b32 s27, s2, 7\n  s_lshr_b32 s28, s2, 3\n  s_lshr_b32 s29, s28, 3\n  s_lshl_b32 s27, s27, 2\n  s_add_u32 s27, s27, s29")
    if cpf:
        e("  s_cmp_lg_u32 s26, 8\n  s_cbranch_scc1 L_nopf\n  s_getpc_b64 s[30:31]\n  s_and_b32 s30, s30, 0xffffff00\n  s_and_b32 s32, s28, 7\n  s_lshl_b32 s32, s32, 10\n  v_lshl_add_u32 v5, v0, 4, s32\n  global_load_dwordx4 v[20:23], v5, s[30:31]\nL_nopf:")
    e("  s_and_b32 s28, s28, 7\n  s_lshl_b32 s29, s27, 3\n  s_add_u32 s29, s29, s28")
    e("  v_lshlrev_b32 v16, 4, v2\n  v_lshlrev_b32 v17, 4, v0\n  v_mov_b32 v18, 1")
    e("  v_and_b32 v4, 1, v0\n  v_lshlrev_b32 v4, 4, v4\n  v_mov_b32 v5, 0xffff\n  v_lshlrev_b32 v5, v4, v5\n  v_bfe_u32 v4, v0, 1, 2")
    for r in range(4):
        e(f"  v_cmp_eq_u32 vcc, {r}, v4\n  s_nop 1\n  v_cndmask_b32 v{12+r}, 0, v5, vcc")
    e("  v_lshl_add_u32 v20, v3, 15, v16\n  v_add_u32 v21, 0x2000, v20\n  v_add_u32 v22, 0x4000, v20\n  v_add_u32 v23, 0x6000, v20")
    e("  v_lshlrev_b32 v26, 4, v3\n  v_lshl_add_u32 v24, v2, 8, v26\n  v_lshl_add_u32 v25, v3, 10, v16")
    e("  s_sub_u32 s51, s26, 1\n  s_mul_i32 s33, s28, 5\n  s_add_u32 s33, s33, s51")
    e("  s_lshl_b32 s34, s27, 8")
    e("  s_lshl_b32 s35, s33, 17\n  s_add_u32 s35, s35, s34")
    e("  s_lshl_b32 s48, s27, 20\n  s_lshl_b32 s49, s28, 15\n  s_add_u32 s48, s48, s49\n  s_lshl_b32 s49, s51, 13\n  s_add_u32 s48, s48, s49\n  s_add_u32 s48, s48, 786432\n  s_add_u32 s49, s48, 4096")
    e("  v_lshlrev_b32 v4, 2, v0\n  s_cmp_lg_u32 s26, 0\n  s_waitcnt lgkmcnt(0)\n  s_cbranch_scc1 L_nox")
    srd(40, 4, 1280)
    e("  buffer_load_dwordx4 v[20:23], v17, s[40:43], 0 offen\n  buffer_load_dword v24, v4, s[40:43], 0 offen offset:1024\n  s_setprio 3\n  s_barrier\n  s_branch L_A\nL_nox:\n  s_barrier")
    e("  s_cmp_ge_u32 s26, 5\n  s_cbranch_scc1 L_W")

    vm = VM(e)
    srd(44, 10, SIZES["wq"])
    def unit_issue(i):
        b = 48 + 16 * (i % ring)
        for r in range(4):
            e(f"  buffer_load_dwordx4 v[{b+4*r}:{b+4*r+3}], v{20+r}, s[44:47], s35 offen {wqflags}"); vm.issue(f"u{i}")
    def unit_next():
        e("  s_add_u32 s33, s33, 4\n  s_cmp_ge_u32 s33, 40\n  s_cselect_b32 s32, 40, 0\n  s_sub_u32 s33, s33, s32\n  s_lshl_b32 s35, s33, 17\n  s_add_u32 s35, s35, s34")
    KB, VB = 48 + 16 * ring, 48 + 16 * ring + 32
    unit_issue(0)
    e("  s_mov_b32 s50, s33")
    srd(40, 6, SIZES["k"])
    stamp(1)
    for t in range(8):
        e(f"  buffer_load_dwordx4 v[{KB+4*t}:{KB+4*t+3}], v24, s[40:43], s{48 + t // 4} offen offset:{(t % 4) * 64} {kvflags}"); vm.issue(f"k{t}")
    srd(40, 8, SIZES["v"])
    srd(36, 24, WS)
    nv = [0]
    def v_issue(n):
        for _ in range(n):
            t = nv[0]; nv[0] += 1
            e(f"  buffer_load_dwordx4 v[{VB+4*t}:{VB+4*t+3}], v25, s[40:43], s{48 + t // 4} offen offset:{(t % 4) * 256} {kvflags}"); vm.issue(f"v{t}")
    def unit_consume(i):
        b = 48 + 16 * (i % ring)
        p = 28 + 4 * (i % 2)
        e(f"  s_lshl_b32 s32, s50, 6\n  v_add_u32 v27, s32, v26\n  ds_read_b128 v[{p}:{p+3}], v27 offset:{L_XP}")
        e("  s_add_u32 s50, s50, 4\n  s_cmp_ge_u32 s50, 40\n  s_cselect_b32 s32, 40, 0\n  s_sub_u32 s50, s50, s32\n  s_waitcnt lgkmcnt(0)")
        for r in range(4):
            a = 36 + 4 * (r % 2)
            ands(a, p + r)
            if r == 0: vm.wait(f"u{i}")
            else: e("  s_nop 0")
            e("  s_nop 0")
            e(f"  v_mfma_f32_16x16x32_bf16 v[44:47], v[{a}:{a+3}], v[{b+4*r}:{b+4*r+3}], {'0' if (i == 0 and r == 0) else 'v[44:47]'}")
    v_issue(vsched[0])
    for i in range(1, 10):
        if i >= ring:
            if i == ring: spin_lds(F_LN, 1); stamp(2)
            unit_consume(i - ring)
        unit_next(); unit_issue(i); v_issue(vsched[i])
    assert nv[0] == 8
    signal_add(F_ISS)
    stamp(3)
    for i in range(10 - ring, 10): unit_consume(i)
    e(f"  s_lshl_b32 s32, s51, 9\n  v_lshl_add_u32 v7, v2, 5, v26\n  v_add_u32 v7, s32, v7\n  v_lshlrev_b32 v19, 3, v0\n  v_lshlrev_b32 v6, 2, v0\n  s_mov_b32 exec_hi, 0\n  s_nop 2")
    e(f"  ds_write_b128 v7, v[44:47] offset:{L_QW}")
    signal_add(F_QP)
    spin_lds(F_QP, 4)
    for k in range(4): e(f"  ds_read_b64 v[{28+2*k}:{29+2*k}], v19 offset:{L_QW + 512*k}")
    e("  s_waitcnt lgkmcnt(2)\n  v_add_f32 v28, v28, v30\n  v_add_f32 v29, v29, v31\n  s_waitcnt lgkmcnt(0)\n  v_add_f32 v32, v32, v34\n  v_add_f32 v33, v33, v35\n  v_add_f32 v28, v28, v32\n  v_add_f32 v29, v29, v33")
    e(f"  v_cvt_pk_bf16_f32 v28, v28, v29\n  ds_write_b32 v6, v28 offset:{L_Q}")
    for k in range(4): e(f"  ds_read_b128 v[{48+4*k}:{51+4*k}], v26 offset:{L_Q + 64*k}")
    e(f"  s_mov_b32 s34, {hex(SCALE)}\n  s_mov_b32 s35, {hex(LOG2E)}\n  s_waitcnt lgkmcnt(0)")
    stamp(4)
    vm.wait("k7")
    for t in range(8):
        d = 64 + 4 * (t // 4)
        e(f"  v_mfma_f32_16x16x32_bf16 v[{d}:{d+3}], v[{KB+4*t}:{KB+4*t+3}], v[{48+4*(t%4)}:{51+4*(t%4)}], {'0' if t % 4 == 0 else f'v[{d}:{d+3}]'}")
    e("  s_nop 3")
    S = 64
    for k in range(0, 8, 2):
        a, b = S + k, S + k + 1
        if k == 4: e("  s_nop 0")
        e(f"  v_cvt_pk_bf16_f32 v{a}, v{a}, v{b}\n  v_and_b32 v{b}, 0xffff0000, v{a}\n  v_lshlrev_b32 v{a}, 16, v{a}\n  v_mul_f32 v{a}, s34, v{a}\n  v_mul_f32 v{b}, s34, v{b}")
        e(f"  v_cvt_pk_bf16_f32 v{a}, v{a}, v{b}\n  v_and_b32 v{b}, 0xffff0000, v{a}\n  v_lshlrev_b32 v{a}, 16, v{a}")
    e(f"  v_max3_f32 v10, v{S}, v{S+1}, v{S+2}\n  v_max3_f32 v10, v10, v{S+3}, v{S+4}\n  v_max3_f32 v10, v10, v{S+5}, v{S+6}\n  v_max_f32 v10, v10, v{S+7}")
    allred_rows("v_max_f32", 10, 5)
    for k in range(8): e(f"  v_sub_f32 v{S+k}, v{S+k}, v10\n  v_mul_f32 v{S+k}, s35, v{S+k}\n  v_exp_f32 v{S+k}, v{S+k}")
    e(f"  s_nop 0\n  v_add_f32 v11, v{S}, v{S+1}")
    for k in range(2, 8): e(f"  v_add_f32 v11, v11, v{S+k}")
    for k in range(8):
        e(f"  v_cvt_pk_bf16_f32 v{S+k}, v{S+k}, v{S+k}")
        ands(KB + 4 * k, S + k)
    allred_rows("v_add_f32", 11, 5)
    e(f"  s_lshl_b32 s34, s51, 3\n  v_mov_b32 v5, s34\n  s_mov_b64 exec, 1\n  ds_write_b64 v5, v[10:11] offset:{L_ML}\n  ds_add_u32 v1, v18 offset:{F_ML}\n  s_mov_b64 exec, -1")
    stamp(5)
    for t in range(8):
        vm.wait(f"v{t}")
        e(f"  v_mfma_f32_16x16x32_bf16 v[44:47], v[{KB+4*t}:{KB+4*t+3}], v[{VB+4*t}:{VB+4*t+3}], {'0' if t == 0 else 'v[44:47]'}")
    e(f"  s_mov_b32 exec_hi, 0\n  s_nop 6")
    e(f"  ds_write_b128 v7, v[44:47] offset:{L_OW}")
    signal_add(F_O)
    stamp(6)
    write_stamps()
    e("  s_endpgm")

    e("L_A:")
    vm = VM(e)
    vm.issue("x"); vm.issue("x")
    e(f"  s_load_dword s30, s[24:25], {EPOCH_OFF}")
    srd(36, 24, WS)
    e("  s_mul_i32 s31, s28, 160\n  s_lshl_b32 s56, s27, 3\n  s_add_u32 s56, s56, s31\n  v_and_b32 v26, 1, v0\n  v_lshlrev_b32 v26, 2, v26")
    srd(52, 20, 1280)
    srd(44, 16, SIZES["w1"])
    e("  v_lshrrev_b32 v6, 3, v2\n  v_lshl_add_u32 v6, v3, 1, v6\n  v_mul_u32_u24 v27, 34560, v6\n  v_and_b32 v7, 7, v2\n  v_lshl_add_u32 v27, v7, 4, v27")
    e("  v_mul_u32_u24 v28, 40, v6\n  s_lshl_b32 s32, s31, 1\n  v_add_u32 v28, s32, v28")
    e("  s_mul_i32 s32, s28, 276480\n  s_lshl_b32 s33, s27, 7\n  s_add_u32 s32, s32, s33\n  s_cmp_ge_u32 s27, 27\n  s_cselect_b32 s32, 0x7f000000, s32\n  s_movk_i32 s34, 3456")
    e("  v_and_b32 v5, 1, v3\n  v_lshlrev_b32 v5, 5, v5\n  v_lshrrev_b32 v6, 1, v3\n  v_lshl_add_u32 v5, v6, 4, v5\n  v_lshl_add_u32 v29, v7, 6, v5")
    e("  v_lshlrev_b32 v19, 3, v0\n  s_mov_b32 s64, 0\n  s_mov_b32 s65, -1")
    vm.wait("x")
    for k in range(5):
        e(f"  v_lshlrev_b32 v{30+2*k}, 16, v{20+k}\n  v_and_b32 v{31+2*k}, 0xffff0000, v{20+k}")
    e("  v_add_f32 v4, v30, v31\n  v_add_f32 v5, v32, v33")
    for k in range(4, 10, 2): e(f"  v_add_f32 v4, v4, v{30+k}\n  v_add_f32 v5, v5, v{31+k}")
    e("  v_add_f32 v4, v4, v5")
    allred_inrow("v_add_f32", 4, [8, 4, 2, 1]); allred_rows("v_add_f32", 4, 5)
    e("  v_mul_f32 v4, 0x3ACCCCCD, v4")
    for k in range(10): e(f"  v_sub_f32 v{40+k}, v{30+k}, v4")
    e("  v_mul_f32 v6, v40, v40\n  v_mul_f32 v7, v41, v41")
    for k in range(2, 10, 2): e(f"  v_fmac_f32 v6, v{40+k}, v{40+k}\n  v_fmac_f32 v7, v{41+k}, v{41+k}")
    e("  v_add_f32 v6, v6, v7")
    bf16r(4, 4)
    allred_inrow("v_add_f32", 6, [8, 4, 2, 1]); allred_rows("v_add_f32", 6, 5)
    e("  v_mul_f32 v6, 0x3ACCCCCD, v6")
    bf16r(6, 6)
    e("  v_add_f32 v6, 0x3727C5AC, v6")
    bf16r(6, 6)
    e("  v_sqrt_f32 v7, v6")
    for k in range(10): e(f"  v_sub_f32 v{30+k}, v{30+k}, v4")
    e("  v_rcp_f32 v5, v7\n  v_fma_f32 v10, -v7, v7, v6\n  v_mul_f32 v5, 0.5, v5\n  v_fmac_f32 v7, v10, v5")
    bf16r(7, 7)
    e("  v_rcp_f32 v5, v7")
    for k in range(0, 10, 2):
        e(f"  v_cvt_pk_bf16_f32 v{30+k}, v{30+k}, v{31+k}\n  v_and_b32 v{31+k}, 0xffff0000, v{30+k}\n  v_lshlrev_b32 v{30+k}, 16, v{30+k}")
    for k in range(10): e(f"  v_mul_f32 v{40+k}, v{30+k}, v5")
    for k in range(10): e(f"  v_fma_f32 v{30+k}, -v{40+k}, v7, v{30+k}")
    for k in range(10): e(f"  v_fmac_f32 v{40+k}, v{30+k}, v5")
    for k in range(10): e(f"  v_cvt_pk_bf16_f32 v{40+k}, v{40+k}, v{40+k}")
    e(f"  v_lshlrev_b32 v4, 5, v0\n  ds_write_b128 v4, v[40:43] offset:{L_XP}\n  ds_write_b128 v4, v[44:47] offset:{L_XP+16}\n  ds_write_b64 v19, v[48:49] offset:{L_XP + 2048}")
    signal_add(F_LN)
    stamp(1)
    e("  buffer_load_dword v25, v26, s[40:43], s56 offen"); vm.issue("xr")
    e("  buffer_load_dword v26, v26, s[52:55], s56 offen"); vm.issue("outtouch")
    for t in range(10):
        e(f"  buffer_load_dwordx4 v[{48+4*t}:{51+4*t}], v27, s[44:47], s32 offen {wflags}"); vm.issue(f"w{t}")
        if t < 9: e("  s_add_u32 s32, s32, s34")
    for k in range(5): e(f"  ds_read_b64 v[{30+2*k}:{31+2*k}], v28 offset:{L_XP + 8*k}")
    e("  s_waitcnt lgkmcnt(0)")
    e("  s_mul_i32 s60, s30, 0x9E3779B1\n  s_add_u32 s60, s60, 0x7F4A7C15\n  s_xor_b32 s61, s30, 0x5bd1e995\n  s_mul_i32 s61, s61, 0x85EBCA6B\n  s_add_u32 s61, s61, 0x1B873593")
    for t in range(10):
        a = 40 if t % 2 == 0 else 44
        ands(a, 30 + t)
        vm.wait(f"w{t}")
        e("  s_nop 0")
        e(f"  v_mfma_f32_16x16x32_bf16 v[4:7], v[{a}:{a+3}], v[{48+4*t}:{51+4*t}], {'0' if t == 0 else 'v[4:7]'}")
    e("  v_mov_b32 v9, s60\n  v_mov_b32 v11, s61\n  s_lshl_b32 s32, s29, 9\n  s_add_u32 s32, s32, %d\n  s_nop 4" % X1H)
    for r in range(4): e(f"  v_mov_b32_dpp v{20+r}, v{4+r} row_ror:8 row_mask:0xf bank_mask:0xf")
    for r in range(4): e(f"  v_mov_b32 v{30+r}, v{20+r}")
    e("  s_nop 1")
    for r in range(4): e(f"  v_permlane32_swap_b32 v{20+r}, v{30+r}")
    for r in range(4): e(f"  v_cndmask_b32 v{20+r}, v{30+r}, v{20+r}, s[64:65]")
    for r in range(4): e(f"  v_add_f32 v{4+r}, v{4+r}, v{20+r}")
    e("  v_cndmask_b32 v8, v4, v6, s[64:65]\n  v_cndmask_b32 v10, v5, v7, s[64:65]")
    e("  s_mov_b32 exec_lo, 0x00ff00ff\n  s_mov_b32 exec_hi, 0xff00ff00")
    e("  buffer_store_dwordx4 v[8:11], v29, s[36:39], s32 offen sc1\n  s_mov_b64 exec, -1"); vm.issue("st_h")
    stamp(2)
    e(f"  s_lshl_b32 s34, s27, 12\n  s_add_u32 s34, s34, {X1H}")
    e(f"  s_lshl_b32 s56, s29, 7\n  s_add_u32 s56, s56, {X2ML}")
    e(f"  s_lshl_b32 s57, s29, 10\n  s_add_u32 s57, s57, {X2O}")
    e(f"  s_lshl_b32 s58, s27, 13\n  s_add_u32 s58, s58, {X2O}\n  s_add_u32 s59, s58, 4096")
    e(f"  s_lshl_b32 s66, s27, 10\n  s_add_u32 s66, s66, {X2ML}\n  s_add_u32 s66, s24, s66\n  s_addc_u32 s67, s25, 0")
    spin_lds(F_ML, 4)
    e(f"  ds_read_b128 v[20:23], v1 offset:{L_ML}\n  ds_read_b128 v[30:33], v1 offset:{L_ML+16}")
    def h_issue():
        for k in range(4): e(f"  buffer_load_dwordx4 v[{80+4*k}:{83+4*k}], v17, s[36:39], s34 offen offset:{k * 1024} sc1")
    h_issue()
    for k in range(4): vm.issue("hg")
    e("  s_waitcnt lgkmcnt(0)")
    ms = [20, 22, 30, 32]
    e("  v_max_f32 v24, v20, v22\n  v_max3_f32 v24, v24, v30, v32")
    for m in ms: e(f"  v_sub_f32 v{m}, v{m}, v24\n  v_mul_f32 v{m}, {hex(LOG2E)}, v{m}\n  v_exp_f32 v{m}, v{m}")
    e("  s_nop 0\n  v_mul_f32 v6, v20, v21\n  v_fmac_f32 v6, v22, v23\n  v_fmac_f32 v6, v30, v31\n  v_fmac_f32 v6, v32, v33\n  v_mov_b32 v4, v24\n  v_mov_b32 v5, s60\n  v_mov_b32 v7, s61")
    spin_lds(F_O, 4)
    for k in range(4): e(f"  ds_read_b64 v[{34+2*k}:{35+2*k}], v19 offset:{L_OW + 512*k}")
    e("  s_waitcnt lgkmcnt(3)\n  v_mul_f32 v8, v20, v34\n  v_mul_f32 v10, v20, v35")
    for k in range(1, 4): e(f"  s_waitcnt lgkmcnt({3-k})\n  v_fmac_f32 v8, v{ms[k]}, v{34+2*k}\n  v_fmac_f32 v10, v{ms[k]}, v{35+2*k}")
    e("  buffer_store_dwordx4 v[8:11], v17, s[36:39], s57 offen sc1"); vm.issue("st_o")
    e("  s_mov_b64 exec, 0xff\n  buffer_store_dwordx4 v[4:7], v17, s[36:39], s56 offen sc1\n  s_mov_b64 exec, -1"); vm.issue("st_ml")
    stamp(3)
    e(f"  s_mov_b32 s71, {SPIN_CAP}")
    e("L_sp2:")
    for k, m in enumerate([4, 8, 12, 16, 40, 44, 48, 52]): e(f"  s_load_dwordx4 s[{m}:{m+3}], s[66:67], {128*k} glc")
    e("  s_sub_u32 s71, s71, 1\n  s_cbranch_scc1 L_sp2x\n  s_waitcnt lgkmcnt(0)")
    first = True
    for base in (4, 40):
        for k in range(4):
            e(f"  s_xor_b32 s32, s{base+4*k+1}, s60\n  s_xor_b32 s33, s{base+4*k+3}, s61")
            if first: e("  s_or_b32 s35, s32, s33"); first = False
            else: e("  s_or_b32 s35, s35, s32\n  s_or_b32 s35, s35, s33")
    e("  s_cbranch_scc1 L_sp2\nL_sp2x:\n  s_waitcnt lgkmcnt(0)")
    def o_issue():
        for k in range(8): e(f"  buffer_load_dwordx4 v[{48+4*k}:{51+4*k}], v17, s[36:39], s{58 + k // 4} offen offset:{(k % 4) * 1024} sc1")
    o_issue()
    for k in range(8): vm.issue("og")
    stamp(4)
    vm.wait("hg")
    e(f"  s_mov_b32 s71, {SPIN_CAP}")
    e("L_hchk:\n  v_mov_b32 v4, 0")
    for k in range(4): e(f"  v_sad_u32 v4, v{81+4*k}, s60, v4 clamp\n  v_sad_u32 v4, v{83+4*k}, s61, v4 clamp")
    e("  v_cmp_ne_u32 vcc, 0, v4\n  s_cbranch_vccz L_hok\n  s_sub_u32 s71, s71, 1\n  s_cbranch_scc1 L_hok")
    h_issue()
    e("  s_waitcnt vmcnt(0)\n  s_branch L_hchk\nL_hok:")
    e("  v_add_f32 v80, v80, v84\n  v_add_f32 v82, v82, v86\n  v_add_f32 v88, v88, v92\n  v_add_f32 v90, v90, v94\n  v_add_f32 v80, v80, v88\n  v_add_f32 v82, v82, v90")
    e("  v_mov_b32 v81, v80\n  v_mov_b32 v83, v82\n  s_nop 0\n  v_permlane32_swap_b32 v80, v81\n  v_permlane32_swap_b32 v82, v83\n  v_add_f32 v80, v80, v81\n  v_add_f32 v82, v82, v83")
    e("  v_cvt_pk_bf16_f32 v80, v80, v82\n  v_and_b32 v81, 0xffff0000, v80\n  v_lshlrev_b32 v80, 16, v80")
    e(f"  v_mul_f32 v84, {hex(LOG2E | 0x80000000)}, v80\n  v_mul_f32 v85, {hex(LOG2E | 0x80000000)}, v81\n  v_exp_f32 v84, v84\n  v_exp_f32 v85, v85\n  s_nop 0\n  v_add_f32 v84, 1.0, v84\n  v_add_f32 v85, 1.0, v85\n  v_rcp_f32 v84, v84\n  v_rcp_f32 v85, v85\n  s_nop 0\n  v_mul_f32 v80, v80, v84\n  v_mul_f32 v81, v81, v85\n  v_cvt_pk_bf16_f32 v80, v80, v80\n  v_cvt_pk_bf16_f32 v81, v81, v81")
    e(f"  s_mov_b32 exec_hi, 0\n  ds_write_b64 v19, v[80:81] offset:{L_HP}")
    signal_add(F_H)
    mreg = [4, 8, 12, 16, 40, 44, 48, 52]
    e(f"  v_mov_b32 v20, s{mreg[0]}")
    for k in range(1, 8): e(f"  v_max_f32 v20, s{mreg[k]}, v20")
    for k in range(8): e(f"  v_sub_f32 v{30+k}, s{mreg[k]}, v20")
    for k in range(8): e(f"  v_mul_f32 v{30+k}, {hex(LOG2E)}, v{30+k}")
    for k in range(8): e(f"  v_exp_f32 v{30+k}, v{30+k}")
    e(f"  s_nop 0\n  v_mul_f32 v21, s{mreg[0]+2}, v30")
    for k in range(1, 8): e(f"  v_fmac_f32 v21, s{mreg[k]+2}, v{30+k}")
    e("  v_rcp_f32 v21, v21\n  s_nop 0")
    for k in range(8): e(f"  v_mul_f32 v{30+k}, v{30+k}, v21")
    e("  v_lshrrev_b32 v22, 1, v0\n  v_mul_u32_u24 v22, 640, v22\n  v_and_b32 v23, 1, v0\n  v_lshl_add_u32 v22, v23, 4, v22")
    e(f"  s_mul_i32 s32, s28, 20480\n  s_add_u32 s32, s32, {X3}\n  s_mul_i32 s33, s27, 640\n  s_add_u32 s33, s33, s32\n  s_lshl_b32 s35, s27, 5\n  s_add_u32 s35, s35, s32")
    srd(40, 20, 1280)
    e(f"  s_mov_b32 s71, {SPIN_CAP}")
    e("L_ochk:\n  v_mov_b32 v4, 0")
    for k in range(8):
        e(f"  s_waitcnt vmcnt({7-k})\n  v_sad_u32 v4, v{49+4*k}, s60, v4 clamp\n  v_sad_u32 v4, v{51+4*k}, s61, v4 clamp")
        if k == 0: e("  v_mul_f32 v8, v30, v48\n  v_mul_f32 v10, v30, v50")
        else: e(f"  v_fmac_f32 v8, v{30+k}, v{48+4*k}\n  v_fmac_f32 v10, v{30+k}, v{50+4*k}")
    e("  v_cmp_ne_u32 vcc, 0, v4\n  s_cbranch_vccz L_ook\n  s_sub_u32 s71, s71, 1\n  s_cbranch_scc1 L_ook")
    o_issue()
    e("  s_branch L_ochk\nL_ook:")
    e(f"  v_cvt_pk_bf16_f32 v6, v8, v8\n  v_cvt_pk_bf16_f32 v7, v10, v10\n  ds_write_b64 v19, v[6:7] offset:{L_OP}\n  s_waitcnt lgkmcnt(0)\n  s_barrier")
    stamp(5)
    e("  v_cmp_gt_u32 vcc, 40, v0\n  v_lshlrev_b32 v4, 16, v25\n  v_and_b32 v5, 0xffff0000, v25\n  s_lshl_b32 s34, s27, 3\n  s_add_u32 s34, s34, s31\n  v_lshlrev_b32 v24, 2, v0")
    e("  s_barrier")
    for k in range(4): e(f"  ds_read_b64 v[{32+2*k}:{33+2*k}], v19 offset:{L_YW + 512*k}")
    e("  s_waitcnt lgkmcnt(2)\n  v_add_f32 v8, v32, v34\n  v_add_f32 v10, v33, v35\n  s_waitcnt lgkmcnt(0)\n  v_add_f32 v36, v36, v38\n  v_add_f32 v37, v37, v39\n  v_add_f32 v8, v8, v36\n  v_add_f32 v10, v10, v37")
    e("  s_mov_b64 exec, vcc\n  buffer_store_dwordx4 v[8:11], v17, s[36:39], s33 offen sc1\n  s_mov_b64 exec, -1")
    stamp(6)
    e("  s_cmp_ge_u32 s27, 20\n  s_cbranch_scc1 L_Aend")
    e(f"  s_mov_b32 s71, {SPIN_CAP}")
    e("L_g3:")
    e("  buffer_load_dwordx4 v[48:51], v22, s[36:39], s35 offen sc1")
    e("  s_sub_u32 s71, s71, 1\n  s_cbranch_scc1 L_g3x\n  s_waitcnt vmcnt(0)\n  v_xor_b32 v6, s60, v49\n  v_xor_b32 v7, s61, v51\n  v_or_b32 v6, v6, v7")
    e("  v_cmp_ne_u32 vcc, 0, v6\n  s_cbranch_vccnz L_g3\nL_g3x:\n  s_waitcnt vmcnt(0)")
    for r in (2, 4, 8):
        e(f"  v_add_f32_dpp v48, v48, v48 row_ror:{r} row_mask:0xf bank_mask:0xf\n  v_add_f32_dpp v50, v50, v50 row_ror:{r} row_mask:0xf bank_mask:0xf\n  s_nop 0")
    e("  v_mov_b32 v49, v48\n  v_mov_b32 v51, v50\n  s_nop 0\n  v_permlane16_swap_b32 v48, v49\n  v_permlane16_swap_b32 v50, v51\n  v_add_f32 v48, v48, v49\n  v_add_f32 v50, v50, v51")
    e("  v_mov_b32 v49, v48\n  v_mov_b32 v51, v50\n  s_nop 0\n  v_permlane32_swap_b32 v48, v49\n  v_permlane32_swap_b32 v50, v51\n  v_add_f32 v48, v48, v49\n  v_add_f32 v50, v50, v51")
    e("  v_add_f32 v48, v48, v4\n  v_add_f32 v50, v50, v5\n  v_cvt_pk_bf16_f32 v48, v48, v50")
    e("  s_mov_b64 exec, 3\n  buffer_store_dword v48, v24, s[40:43], s34 offen")
    e(f"  s_cmp_lg_u32 s29, 0\n  s_cbranch_scc1 L_Aend\n  s_add_u32 s30, s30, 1\n  v_mov_b32 v5, s30\n  s_mov_b64 exec, 1\n  buffer_store_dword v5, v1, s[36:39], 0 offen offset:{EPOCH_OFF} sc1")
    e("L_Aend:")
    if pad:
        e(f"L_pad:\n  s_memrealtime s[78:79]\n  s_waitcnt lgkmcnt(0)\n  s_sub_u32 s78, s78, s76\n  s_cmp_lt_i32 s78, {pad}\n  s_cbranch_scc1 L_pad")
    stamp(7)
    write_stamps()
    e("  s_endpgm")

    e("L_W:")
    vm = VM(e)
    srd(36, 24, WS)
    e("  s_sub_u32 s31, s26, 5")
    srd(40, 18, SIZES["w2"]); srd(44, 12, SIZES["wo"])
    e("  v_cmp_gt_u32 vcc, 10, v2\n  v_mov_b32 v4, 0x7f000000\n  s_nop 0\n  v_cndmask_b32 v4, v4, v16, vcc")
    e("  v_mul_u32_u24 v5, 5120, v3\n  v_add_u32 v5, v5, v4\n  v_mul_u32_u24 v6, 10240, v3\n  v_add_u32 v6, v6, v4")
    e("  s_mul_i32 s34, s28, 160")
    e("  s_lshl_b32 s32, s27, 2\n  s_add_u32 s32, s32, s31\n  s_mul_i32 s33, s32, 40960\n  s_mul_i32 s32, s32, 20480\n  s_add_u32 s32, s32, s34\n  s_add_u32 s33, s33, s34\n  s_add_u32 s35, s33, 5120")
    e("  s_cmp_ge_u32 s27, 27\n  s_cselect_b32 s32, 0x7f000000, s32")
    e(f"  s_lshl_b32 s34, s31, 6\n  v_lshl_add_u32 v11, v3, 4, s34")
    e(f"  s_lshl_b32 s34, s31, 7\n  v_lshl_add_u32 v7, v3, 5, s34")
    e(f"  s_lshl_b32 s34, s31, 9\n  v_lshlrev_b32 v10, 4, v3\n  v_lshl_add_u32 v10, v2, 5, v10\n  v_add_u32 v10, s34, v10")
    if cpf: e("  s_waitcnt vmcnt(0)")
    spin_lds(F_ISS, issgate)
    stamp(1)
    for t in range(4): e(f"  buffer_load_dwordx4 v[{48+4*t}:{51+4*t}], v5, s[40:43], s32 offen offset:{t * 1280} {wflags}"); vm.issue(f"a{t}")
    for t in range(8): e(f"  buffer_load_dwordx4 v[{64+4*t}:{67+4*t}], v6, s[44:47], s{33 if t < 4 else 35} offen offset:{(t % 4) * 1280} {wflags}"); vm.issue(f"b{t}")
    stamp(2)
    spin_lds(F_H, 1)
    e(f"  ds_read_b128 v[20:23], v11 offset:{L_HP}\n  s_waitcnt lgkmcnt(0)")
    for t in range(4):
        a = 40 if t % 2 == 0 else 44
        ands(a, 20 + t)
        vm.wait(f"a{t}")
        e("  s_nop 0")
        e(f"  v_mfma_f32_16x16x32_bf16 v[36:39], v[{a}:{a+3}], v[{48+4*t}:{51+4*t}], {'0' if t == 0 else 'v[36:39]'}")
    stamp(3)
    e("  s_barrier")
    e(f"  ds_read_b128 v[20:23], v7 offset:{L_OP}\n  ds_read_b128 v[24:27], v7 offset:{L_OP + 16}\n  s_waitcnt lgkmcnt(1)")
    stamp(4)
    for t in range(8):
        a = 40 if t % 2 == 0 else 44
        if t == 4: e("  s_waitcnt lgkmcnt(0)")
        ands(a, 20 + t)
        vm.wait(f"b{t}")
        e("  s_nop 0")
        e(f"  v_mfma_f32_16x16x32_bf16 v[36:39], v[{a}:{a+3}], v[{64+4*t}:{67+4*t}], v[36:39]")
    e("  s_mov_b32 exec_hi, 0\n  s_nop 6")
    e(f"  ds_write_b128 v10, v[36:39] offset:{L_YW}\n  s_waitcnt lgkmcnt(0)\n  s_barrier")
    stamp(5)
    write_stamps()
    e("L_end:")
    e(footer(48 + 16 * ring + 64))
    open(fname, "w").write("\n".join(o))

if __name__ == "__main__":
    gen("v2.s")
    gen("v2_st.s", stamps=True)
    gen("v2_st_nt.s", stamps=True, wqflags="nt")
    gen("v2_st_b.s", stamps=True, vsched=(0,1,1,1,1,1,1,1,1,0))
    gen("v2_st_c.s", stamps=True, vsched=(0,0,0,0,0,0,0,1,1,6))
    gen("v2_st_nopf.s", stamps=True, cpf=False)
```
